```python
import torch

def _softmax(x, axis=-1):
    return torch.softmax(x, dim=axis)
def _gelu(x):
    return torch.nn.functional.gelu(x, approximate="tanh")
def _silu(x):
    return torch.nn.functional.silu(x)
def _sigmoid(x):
    return torch.sigmoid(x)
def _layernorm(x, axis=-1, eps=1e-5):
    m = x.mean(dim=axis, keepdim=True)
    v = x.var(dim=axis, keepdim=True, unbiased=False)
    return (x - m) / torch.sqrt(v + eps)
def _scatter_add(tgt, idx, src, axis=0):
    return tgt.clone().index_add_(axis, idx, src)
def _segment_sum(src, seg, n):
    out = torch.zeros((n,) + src.shape[1:], dtype=src.dtype)
    return out.index_add_(0, seg, src)
def _pad(x, pw):
    flat = tuple(v for pair in reversed(pw) for v in pair)
    return torch.nn.functional.pad(x, flat)

kernel_name = 'interleave_layers__sliding_block__linear_attn_block__prompt'

def setup_inputs():

    _w = (lambda a: (lambda t: t.to(torch.bfloat16) if t.is_floating_point() else t)(torch.as_tensor(a)))
    def _A_setup():
        B, S, D = 1, 2048, 512
        return {
            "x": _w((lambda *s: torch.randn(*s, dtype=torch.bfloat16) * 0.05)(B, S, D)),
            "wqkv": _w((lambda *s: torch.randn(*s, dtype=torch.bfloat16) * 0.1)(D, 3 * D)),
            "wo": _w((lambda *s: torch.randn(*s, dtype=torch.bfloat16) * 0.1)(D, D)),
        }
    _A_in = _A_setup()

    def _B_setup():
        B, S, D = 1, 2048, 512
        return {
            "x": _w((lambda *s: torch.randn(*s, dtype=torch.bfloat16) * 0.05)(B, S, D)),
            "wqkv": _w((lambda *s: torch.randn(*s, dtype=torch.bfloat16) * 1.6)(D, 3 * D)),
            "wo": _w((lambda *s: torch.randn(*s, dtype=torch.bfloat16) * 0.1)(D, D)),
        }
    _B_in = _B_setup()

    return {
        "A_x": _A_in["x"],
        "A_wqkv": _A_in["wqkv"],
        "A_wo": _A_in["wo"],
        "B_x": _B_in["x"],
        "B_wqkv": _B_in["wqkv"],
        "B_wo": _B_in["wo"],
    }

def reference(A_x, A_wqkv, A_wo, B_x, B_wqkv, B_wo):
    def _A_ref(x, wqkv, wo):
        B, S, D = x.shape
        H = 32; Dh = D // H; W = 256
        qkv = (lambda x, *d: x.permute(*d))((x @ wqkv).reshape(B, S, 3, H, Dh), 2, 0, 3, 1, 4)
        q, k, v = qkv[0], qkv[1], qkv[2]
        scores = torch.einsum("bhqd,bhkd->bhqk", q, k) * (Dh ** -0.5)
        idx = torch.arange(S)
        mask = (idx[:, None] - idx[None, :] >= 0) & (idx[:, None] - idx[None, :] < W)
        scores = torch.where(mask[None, None], scores, -1e9)
        p = _softmax(scores, axis=-1)
        o = torch.einsum("bhqk,bhkd->bhqd", p, v)
        return (lambda x, *d: x.permute(*d))(o, 0, 2, 1, 3).reshape(B, S, D) @ wo

    def _B_ref(x, wqkv, wo):
        B, S, D = x.shape
        H = 32; Dh = D // H
        qkv = (lambda x, *d: x.permute(*d))((x @ wqkv).reshape(B, S, 3, H, Dh), 2, 0, 3, 1, 4)
        q, k, v = qkv[0], qkv[1], qkv[2]
        phi = lambda t: torch.where(t > 0, t + 1, torch.exp(t)) + 1e-6
        pq, pk = phi(q), phi(k)
        kv = torch.einsum("bhsd,bhse->bhde", pk, v)
        z = torch.einsum("bhsd->bhd", pk)
        num = torch.einsum("bhqd,bhde->bhqe", pq, kv)
        den = torch.einsum("bhqd,bhd->bhq", pq, z)[..., None] + 1e-6
        o = num / den
        return (lambda x, *d: x.permute(*d))(o, 0, 2, 1, 3).reshape(B, S, D) @ wo

    x = A_x
    x = x + _A_ref(_layernorm(x, axis=-1), A_wqkv, A_wo)
    x = x + _B_ref(_layernorm(x, axis=-1), B_wqkv, B_wo)
    x = x + _A_ref(_layernorm(x, axis=-1), A_wqkv, A_wo)
    x = x + _B_ref(_layernorm(x, axis=-1), B_wqkv, B_wo)
    return x
```

```python
import re

REG_RE = re.compile(r'\b([vas])\[(\d+):(\d+)\]|\b([vas])(\d+)\b|\b(vcc|exec|m0)\b')

def regs_of(op):
    out = set()
    for m in REG_RE.finditer(op):
        if m.group(1):
            for i in range(int(m.group(2)), int(m.group(3)) + 1):
                out.add(m.group(1) + str(i))
        elif m.group(4):
            out.add(m.group(4) + m.group(5))
        else:
            out.add(m.group(6))
    return out

TRANS = ('v_exp_', 'v_log_', 'v_rcp_', 'v_rsq_', 'v_sqrt_', 'v_sin_', 'v_cos_')

class Ins:
    __slots__ = ('text', 'op', 'kind', 'wr', 'rd', 'srcA', 'srcB', 'srcC', 'states', 'passes', 'trans', 'dot', 'wide_store_data', 'lds_dma', 'sgpr_rd')
    def __init__(self, text):
        self.text = text
        t = text.split(';')[0].strip()
        parts = t.split(None, 1)
        op = parts[0]
        self.op = op
        rest = parts[1] if len(parts) > 1 else ''
        ops = []
        depth = 0; cur = ''
        for ch in rest:
            if ch == '[': depth += 1
            if ch == ']': depth -= 1
            if ch == ',' and depth == 0:
                ops.append(cur.strip()); cur = ''
            else:
                cur += ch
        if cur.strip(): ops.append(cur.strip())
        mods = ''
        if ops:
            sp = ops[-1].split(None, 1)
            ops[-1] = sp[0]
            mods = sp[1] if len(sp) > 1 else ''
        self.wr = set(); self.rd = set()
        self.srcA = self.srcB = self.srcC = set()
        self.states = 1; self.passes = 0; self.trans = False; self.dot = False
        self.wide_store_data = set(); self.lds_dma = False
        R = [regs_of(o) for o in ops]
        if op == 's_nop':
            self.kind = 'nop'; self.states = int(ops[0], 0) + 1
        elif op.startswith('v_mfma'):
            self.kind = 'mfma'
            self.wr = R[0]; self.srcA, self.srcB, self.srcC = R[1], R[2], R[3]
            self.rd = R[1] | R[2] | R[3]
            self.passes = 8 if '32x32' in op else 4
        elif op.startswith('v_'):
            self.kind = 'valu'
            if op.startswith('v_cmp'):
                self.wr = R[0]; self.rd = set().union(*R[1:])
            elif op.startswith('v_permlane') and 'swap' in op:
                self.wr = R[0] | R[1]; self.rd = R[0] | R[1]
            elif op.startswith('v_readfirstlane') or op.startswith('v_readlane'):
                self.wr = R[0]; self.rd = set().union(*R[1:])
            elif op.startswith('v_add_co') or op.startswith('v_sub_co') or op.startswith('v_addc_co'):
                self.wr = R[0] | R[1]; self.rd = set().union(*R[2:])
            else:
                self.wr = R[0]; self.rd = set().union(*R[1:]) if len(R) > 1 else set()
                if op.startswith('v_fmac') or op.startswith('v_dot2c') or op.startswith('v_writelane') or op.startswith('v_pk_fmac'):
                    self.rd = self.rd | R[0]
                if op.startswith('v_cndmask') and len(ops) == 3:
                    self.rd = self.rd | {'vcc'}
            self.trans = op.startswith(TRANS)
            self.dot = op.startswith('v_dot')
        elif op.startswith('buffer_') or op.startswith('global_'):
            self.kind = 'vmem'
            if 'lds' in mods.split():
                self.lds_dma = True
                self.rd = set().union(*R) | {'m0'}
            elif 'store' in op or 'atomic' in op:
                self.rd = set().union(*R)
                data = R[0] if op.startswith('buffer_') else R[1]
                if 'x3' in op or 'x4' in op: self.wide_store_data = data
            elif op in ('buffer_inv', 'buffer_wbl2'):
                pass
            else:
                self.wr = R[0]; self.rd = set().union(*R[1:])
        elif op.startswith('ds_'):
            self.kind = 'ds'
            if op.startswith('ds_read') or op.startswith('ds_bpermute') or op.startswith('ds_swizzle'):
                self.wr = R[0]; self.rd = set().union(*R[1:])
            else:
                self.rd = set().union(*R)
        elif op.startswith('s_'):
            self.kind = 'salu'
            if op.startswith(('s_cmp', 's_cbranch', 's_branch', 's_waitcnt', 's_barrier', 's_endpgm', 's_sleep', 's_setprio', 's_bitcmp')):
                self.rd = set().union(*R) if R else set()
            else:
                self.wr = R[0] if R else set(); self.rd = set().union(*R[1:]) if len(R) > 1 else set()
        else:
            raise ValueError('unknown instr ' + text)

def need(prev, cur):
    n = 0
    pw_v = {r for r in prev.wr if r[0] in 'va' and r not in ('vcc',)}
    pw_s = {r for r in prev.wr if r[0] == 's' or r == 'vcc'}
    if prev.kind == 'valu':
        if cur.kind == 'mfma' and pw_v & cur.rd: n = max(n, 2)
        if cur.kind == 'valu':
            if cur.op.startswith('v_permlane') and pw_v & cur.rd: n = max(n, 2)
            if (cur.op.startswith('v_readfirstlane') or cur.op.startswith('v_readlane')) and pw_v & cur.rd: n = max(n, 1)
            if prev.trans and not cur.trans and pw_v & cur.rd: n = max(n, 1)
            if pw_s & cur.rd:
                n = max(n, 4 if (cur.op.startswith('v_readlane') or cur.op.startswith('v_writelane')) else 2)
            if 'dpp' in cur.text and pw_v & cur.rd: n = max(n, 2)
        if prev.trans and cur.kind in ('vmem', 'ds') and pw_v & cur.rd: n = max(n, 1)
        if prev.dot and pw_v & (cur.rd | cur.wr):
            same_acc = cur.op == prev.op and not (pw_v & (cur.rd - cur.wr))
            if not same_acc: n = max(n, 3)
        if cur.kind == 'vmem' and pw_s & cur.rd: n = max(n, 5)
        if cur.kind == 'salu' and pw_s & cur.rd: n = max(n, 1)
    if prev.kind == 'mfma':
        big = {4: 8, 8: 12}[prev.passes]
        if cur.kind == 'mfma':
            if prev.wr & (cur.srcA | cur.srcB): n = max(n, big)
            if prev.wr & cur.srcC:
                if prev.wr == cur.srcC and prev.passes == cur.passes: pass
                else: n = max(n, big - 2)
            elif prev.wr & cur.wr: n = max(n, big)
        elif cur.kind in ('valu', 'vmem', 'ds'):
            if prev.wr & (cur.rd | cur.wr): n = max(n, big)
            if cur.kind == 'valu' and prev.srcC & cur.wr: n = max(n, {4: 3, 8: 7}[prev.passes])
            if cur.kind in ('vmem', 'ds') and prev.srcC & cur.wr: n = max(n, {4: 3, 8: 7}[prev.passes])
    if prev.kind == 'salu' and 'm0' in prev.wr and cur.lds_dma: n = max(n, 1)
    if prev.wide_store_data and prev.wide_store_data & cur.wr:
        n = max(n, 2 if cur.kind in ('valu', 'mfma') else 1)
    return n

class Asm:
    def __init__(self):
        self.out = []
        self.hist = []
        self.nops = 0
    def raw(self, s):
        self.out.append(s)
    def comment(self, s):
        self.out.append('    ; ' + s)
    def label(self, l, pad=True):
        if pad: self.flush_hazards()
        self.out.append(l + ':')
    def flush_hazards(self):
        dist = 0; worst = 0
        for p in reversed(self.hist):
            req = 0
            if p.kind == 'mfma': req = 12 if p.passes == 8 else 8
            elif p.kind == 'valu': req = 5 if any(r[0] == 's' or r == 'vcc' for r in p.wr) else (3 if p.dot else 2)
            elif p.wide_store_data: req = 2
            elif p.kind == 'salu' and 'm0' in p.wr: req = 1
            worst = max(worst, req - dist)
            dist += p.states
            if dist > 16: break
        if worst > 0:
            self._nop(worst)
        self.hist = []
    def _nop(self, n):
        while n > 0:
            k = min(n, 16)
            ins = Ins('s_nop %d' % (k - 1))
            self.out.append('    s_nop %d' % (k - 1))
            self.hist.append(ins); self.nops += k
            n -= k
    def __call__(self, text):
        for line in text.split('\n'):
            line = line.strip()
            if not line: continue
            if line.startswith(';'):
                self.out.append('    ' + line); continue
            ins = Ins(line)
            dist = 0; pad = 0
            for p in reversed(self.hist):
                r = need(p, ins)
                if r > dist: pad = max(pad, r - dist)
                dist += p.states
                if dist > 16: break
            if pad: self._nop(pad)
            if ins.op.startswith(('s_cbranch', 's_branch')):
                self.flush_hazards()
            self.out.append('    ' + line)
            self.hist.append(ins)
            if len(self.hist) > 40: self.hist = self.hist[-24:]
    def text(self):
        return '\n'.join(self.out) + '\n'

def v(a, n=1):
    return 'v%d' % a if n == 1 else 'v[%d:%d]' % (a, a + n - 1)
def a(x, n=1):
    return 'a%d' % x if n == 1 else 'a[%d:%d]' % (x, x + n - 1)
def s(x, n=1):
    return 's%d' % x if n == 1 else 's[%d:%d]' % (x, x + n - 1)
```

```python
import sys, math
from asmlib import *

NAME = 'interleave_layers__sliding_block__linear_attn_block__prompt_kernel'
STAMPS = '--stamps' in sys.argv
def optval(name, default):
    for x in sys.argv:
        if x.startswith('--%s=' % name): return int(x.split('=')[1], 0)
    return default
STOP = optval('stop', 99)
FORCE_SLOW = optval('slow', 0)

XBUF, OBUF, XSTAT = 0x000000, 0x200000, 0x400000
GFLAG, HFLAG, KFLAG = 0x440000, 0x448000, 0x450000
LKV = 0x500000
KVBUF = 0x800000
DBGBUF = 0x1000000
WS_BYTES = 0x2000000
OOB = 0x7f000000
L_W, L_KV, L_MISC = 0, 98304, 147456
L_ROW = L_MISC
L_CS = L_MISC + 1024
L_CSP = L_MISC + 2048
LDS_BYTES = 163840
SX, SWQA, SWQB, SWOA, SWOB, SOUT, SWS, SDBG = 24, 28, 32, 36, 40, 44, 48, 52
sR, sC, sW, sT, sXb, sOwn, sPh, sFast = 56, 57, 58, 59, 60, 61, 62, 63
sMASK = 64
sHALF = 96
sIter, sSpin = 98, 99
sT0, sT1, sXcc, sCPh, sDma, sM0, sT2, sT3, sUP = 4, 5, 6, 7, 8, 9, 10, 11, 12
sQS, sEPS, sLkv, sNEG = 14, 15, 16, 17
sST = 18
sHalo0, sHalo1 = 20, 21
sONE = 22
vLane, vL16, vW0, vW2, vDmaW, vFlagG, vStatSt, vKV = 0, 1, 2, 3, 4, 5, 6, 7
vRES = 8
vAQ, vAK, vAV = 16, 32, 48
vT = 64
vX = 128
vCSA = 112
vRSB = 96
vMRB = 16
vMean, vRstd, vMr, vCsV, vCsK, vTa, vTb, vTc = 88, 89, 90, 91, 92, 93, 94, 95
vSTAMP = 111

A = Asm()

class Ctr:
    def __init__(self, cap): self.n = 0; self.done = 0; self.cap = cap
    def issue(self): self.n += 1; return self.n
    def need(self, tok):
        if tok is None or tok <= self.done: return None
        self.done = tok
        return min(self.n - tok, self.cap)
    def reset(self): self.done = self.n
VM, LG = Ctr(63), Ctr(15)
def wait(vm=None, lg=None):
    x = VM.need(vm); y = LG.need(lg)
    parts = []
    if x is not None: parts.append('vmcnt(%d)' % x)
    if y is not None: parts.append('lgkmcnt(%d)' % y)
    if parts: A('s_waitcnt ' + ' '.join(parts))
def wait_all(vm=True, lg=True):
    parts = []
    if vm: parts.append('vmcnt(0)'); VM.reset()
    if lg: parts.append('lgkmcnt(0)'); LG.reset()
    A('s_waitcnt ' + ' '.join(parts))
def vmem(t): A(t); return VM.issue()
def lds(t): A(t); return LG.issue()
def barrier():
    A('s_barrier')

_lab = [0]
def newlab(p='L'):
    _lab[0] += 1
    return '%s_%d' % (p, _lab[0])

_stamp = [0]
stamp_names = []
def stamp(name):
    if not STAMPS: return
    i = _stamp[0]; _stamp[0] += 1
    stamp_names.append(name)
    A('s_memtime %s' % s(sST, 2))
    A('s_waitcnt lgkmcnt(0)'); LG.reset()
    A('s_lshl_b32 %s, %s, 7' % (s(sST + 1), s(sIter)))
    A('s_add_u32 %s, %s, s23' % (s(sST + 1), s(sST + 1)))
    A('v_mov_b32 v95, %s' % s(sST))
    A('s_mov_b64 exec, 1')
    vmem('buffer_store_dword v95, off, %s, %s offset:%d' % (s(SWS, 4), s(sST + 1), 4 * i))
    A('s_mov_b64 exec, -1')

def ckpt(n):
    if STOP == n:
        A('s_waitcnt vmcnt(0) lgkmcnt(0)')
        A('s_branch L_end')

MF = 'v_mfma_f32_32x32x16_bf16'
def mfma(d, x, y, c):
    A('%s %s, %s, %s, %s' % (MF, d, x, y, c))

def srd(dst, lo, nbytes):
    A('s_mov_b32 %s, %s' % (s(dst), s(lo)))
    A('s_and_b32 %s, %s, 0xffff' % (s(dst + 1), s(lo + 1)))
    A('s_mov_b32 %s, 0x%x' % (s(dst + 2), nbytes))
    A('s_mov_b32 %s, 0x00020000' % s(dst + 3))

def poll(voff, srdr, sval, vdst, soff='0'):
    L = newlab('poll'); D = newlab('polld')
    A('s_mov_b32 %s, 400000' % s(sSpin))
    A.label(L)
    A('buffer_load_dword %s, %s, %s, %s offen sc1' % (v(vdst), v(voff), s(srdr, 4), soff))
    A('s_waitcnt vmcnt(0)')
    A('v_cmp_le_u32 vcc, %s, %s' % (s(sval), v(vdst)))
    A('s_cmp_eq_u64 vcc, exec')
    A('s_cbranch_scc1 %s' % D)
    A('s_sub_u32 %s, %s, 1' % (s(sSpin), s(sSpin)))
    A('s_cmp_lg_u32 %s, 0' % s(sSpin))
    A('s_cbranch_scc1 %s' % L)
    A.label(D)
    VM.reset()

def dual(fn):
    F = newlab('fast'); E = newlab('dend')
    n0 = VM.n; d0 = VM.done
    A('s_cmp_lg_u32 %s, 0' % s(sFast))
    A('s_cbranch_scc1 %s' % F)
    fn(' sc0 sc1')
    A('s_branch %s' % E)
    A.label(F)
    VM.n = n0; VM.done = d0
    fn('')
    A.label(E)

def gather(base_s, nfr=32, extra=None):
    toks = []
    for ks in range(nfr):
        if ks % 4 == 0:
            if ks == 0: A('s_mov_b32 %s, %s' % (s(sT0), s(base_s)))
            else: A('s_add_u32 %s, %s, 4096' % (s(sT0), s(sT0)))
        toks.append(vmem('buffer_load_dwordx4 %s, %s, %s, %s offen offset:%d sc1' % (v(vX + 4 * ks, 4), v(vL16), s(SWS, 4), s(sT0), (ks % 4) * 1024)))
        if extra and ks in extra: extra[ks]()
    return toks

def wfrag(dst, tile, ks):
    base, off = (vW0, tile * 32768) if tile < 2 else (vW2, 0)
    off += ks * 1024
    lds('ds_read_b64_tr_b16 %s, %s offset:%d' % (v(dst, 2), v(base), off))
    return lds('ds_read_b64_tr_b16 %s, %s offset:%d' % (v(dst + 2, 2), v(base), off + 512))

def dma_w(srdw, tile, blk, nwaves_log=2, wsel=sW):
    nw = 1 << nwaves_log
    out = []
    out.append('s_add_u32 %s, %s, 0x%x' % (s(sT2), s(sDma), blk * nw * 49152 + tile * 1024))
    out.append('s_add_u32 m0, %s, 0x%x' % (s(sM0), L_W + tile * 32768 + blk * nw * 1024))
    out.append('buffer_load_dwordx4 %s, %s, %s offen lds' % (v(vDmaW), s(srdw, 4), s(sT2)))
    return out
def emit_dma(lst):
    A(lst[0]); A(lst[1]); return vmem(lst[2])

def publish_x(F):
    S, Q = vTa, vTb
    S, Q = 94, 95
    A('v_mov_b32 %s, 0' % v(S)); A('v_mov_b32 %s, 0' % v(Q))
    def st(sc):
        vmem('buffer_store_dwordx4 %s, %s, %s, %s offen%s' % (v(F, 4), v(vL16), s(SWS, 4), s(sT0), sc))
        vmem('buffer_store_dwordx4 %s, %s, %s, %s offen offset:1024%s' % (v(F + 4, 4), v(vL16), s(SWS, 4), s(sT0), sc))
    dual(st)
    for d in range(8):
        A('v_dot2c_f32_bf16 %s, %s, %s' % (v(S), s(sONE), v(F + d)))
        A('v_dot2c_f32_bf16 %s, %s, %s' % (v(Q), v(F + d), v(F + d)))
    A('v_mov_b32 v92, %s' % v(S)); A('v_mov_b32 v93, %s' % v(Q))
    A('v_permlane32_swap_b32 v92, %s' % v(S))
    A('v_permlane32_swap_b32 v93, %s' % v(Q))
    A('v_pk_add_f32 %s, %s, v[92:93]' % (v(S, 2), v(S, 2)))
    def st2(sc):
        vmem('buffer_store_dwordx2 %s, %s, %s, %s offen%s' % (v(S, 2), v(vStatSt), s(SWS, 4), s(sT3), sc))
    dual(st2)

def flag_g(toff_s):
    A('s_or_b32 %s, %s, %s' % (s(sT1), s(sPh), s(sXcc)))
    A('v_mov_b32 %s, %s' % (v(vTa), s(sT1)))
    A('s_mov_b64 exec, 1')
    def st(sc):
        vmem('buffer_store_dword %s, off, %s, %s%s' % (v(vTa), s(SWS, 4), s(toff_s), sc))
    dual(st)
    A('s_mov_b64 exec, -1')

def prologue():
    A.raw('; generated by gen/gen.py')
    A('s_cmp_ge_u32 s2, 256')
    A('s_cbranch_scc1 L_end')
    A('s_load_dwordx16 s[4:19], s[0:1], 0')
    A('s_load_dwordx2 s[20:21], s[0:1], 64')
    A('v_lshrrev_b32 v1, 6, v0')
    A('v_and_b32 %s, 63, v0' % v(vLane))
    A('v_readfirstlane_b32 %s, v1' % s(sW))
    A('s_and_b32 s3, s2, 7')
    A('s_lshr_b32 %s, s2, 3' % s(sC))
    A('s_lshr_b32 %s, %s, 4' % (s(sR), s(sC)))
    A('s_lshl_b32 s3, s3, 1')
    A('s_add_u32 %s, %s, s3' % (s(sR), s(sR)))
    A('s_and_b32 %s, %s, 15' % (s(sC), s(sC)))
    A('s_lshl_b32 %s, %s, 2' % (s(sT), s(sR)))
    A('s_add_u32 %s, %s, %s' % (s(sT), s(sT), s(sW)))
    A('v_lshlrev_b32 %s, 4, %s' % (v(vL16), v(vLane)))
    A('s_waitcnt lgkmcnt(0)')
    srd(SX, 4, 0x200000); srd(SWQA, 6, 0x180000); srd(SWOA, 8, 0x80000)
    srd(SWQB, 12, 0x180000); srd(SWOB, 14, 0x80000); srd(SOUT, 16, 0x200000)
    srd(SDBG, 18, 256); srd(SWS, 20, WS_BYTES)
    A('s_mov_b32 %s, 0' % s(sIter))
    A('s_mov_b32 %s, 0' % s(sFast))
    A('s_mov_b32 %s, 0x3f803f80' % s(sONE))
    A('s_getreg_b32 %s, hwreg(HW_REG_XCC_ID)' % s(sXcc))
    A('s_and_b32 %s, %s, 15' % (s(sXcc), s(sXcc)))
    if STAMPS:
        A('s_lshl_b32 s23, s2, 2'); A('s_add_u32 s23, s23, %s' % s(sW))
        A('s_lshl_b32 s23, s23, 8'); A('s_add_u32 s23, s23, 0x%x' % DBGBUF)
    stamp('start')
    A('v_lshrrev_b32 v64, 2, %s' % v(vLane))
    A('v_and_b32 v65, 3, %s' % v(vLane))
    A('v_lshlrev_b32 v65, 4, v65')
    A('s_lshl_b32 %s, %s, 6' % (s(sT0), s(sC)))
    A('v_add_u32 v65, %s, v65' % s(sT0))
    A('v_mul_u32_u24 %s, 3072, v64' % v(vDmaW))
    A('v_add_u32 %s, %s, v65' % (v(vDmaW), v(vDmaW)))
    A('v_lshl_add_u32 v66, v64, 10, v65')
    A('s_lshr_b32 %s, %s, 1' % (s(sT0), s(sC))); A('s_and_b32 %s, %s, 3' % (s(sT0), s(sT0))); A('s_lshl_b32 %s, %s, 10' % (s(sT0), s(sT0)))
    A('s_lshr_b32 %s, %s, 3' % (s(sT1), s(sC))); A('s_lshl_b32 %s, %s, 9' % (s(sT1), s(sT1))); A('s_add_u32 %s, %s, %s' % (s(sT0), s(sT0), s(sT1)))
    A('s_and_b32 %s, %s, 1' % (s(sT1), s(sC))); A('s_lshl_b32 %s, %s, 3' % (s(sT1), s(sT1))); A('s_add_u32 %s, %s, %s' % (s(sT0), s(sT0), s(sT1)))
    A('s_add_u32 %s, %s, 0x%x' % (s(sT0), s(sT0), XSTAT))
    A('v_add_u32 %s, %s, %s' % (v(vStatSt), s(sT0), v(vL16)))
    A('s_mov_b32 %s, 0' % s(sUP)); A('s_mov_b32 %s, -1' % s(sUP + 1))
    A('v_mov_b32 v67, 0x%x' % OOB)
    A('v_cndmask_b32 %s, %s, v67, %s' % (v(vStatSt), v(vStatSt), s(sUP, 2)))
    A('s_mov_b32 %s, 0x100' % s(sPh))
    Ldma = newlab('dma0'); Lj = newlab('join0')
    A('s_cmp_ge_u32 %s, 2' % s(sW))
    A('s_cbranch_scc1 %s' % Ldma)
    A('v_and_b32 v64, 31, %s' % v(vLane))
    A('v_lshrrev_b32 v65, 5, %s' % v(vLane))
    A('v_lshlrev_b32 v64, 10, v64')
    A('v_lshl_add_u32 v64, v65, 3, v64')
    A('s_lshl_b32 %s, %s, 2' % (s(sT2), s(sR)))
    A('s_lshl_b32 %s, %s, 1' % (s(sT1), s(sW)))
    A('s_add_u32 %s, %s, %s' % (s(sT2), s(sT2), s(sT1)))
    A('s_lshl_b32 %s, %s, 15' % (s(sT0), s(sT2)))
    A('s_lshl_b32 %s, %s, 6' % (s(sT1), s(sC)))
    A('s_add_u32 %s, %s, %s' % (s(sT1), s(sT1), s(sT0)))
    A('s_add_u32 %s, %s, 32768' % (s(sT3), s(sT1)))
    for i in range(4):
        vmem('buffer_load_dwordx2 %s, v64, %s, %s offen offset:%d' % (v(vX + 2 * i, 2), s(SX, 4), s(sT1), i * 16))
    for i in range(4):
        vmem('buffer_load_dwordx2 %s, v64, %s, %s offen offset:%d' % (v(vX + 8 + 2 * i, 2), s(SX, 4), s(sT3), i * 16))
    Lnz = newlab('nz')
    A('s_or_b32 %s, s2, %s' % (s(sT1), s(sW)))
    A('s_cmp_lg_u32 %s, 0' % s(sT1))
    A('s_cbranch_scc1 %s' % Lnz)
    for i in range(4): A('v_mov_b32 %s, 0' % v(68 + i))
    A('v_lshrrev_b32 v65, 2, %s' % v(vLane)); A('v_lshlrev_b32 v65, 7, v65')
    A('v_and_b32 v67, 3, %s' % v(vLane)); A('v_lshl_add_u32 v65, v67, 4, v65')
    A('v_lshlrev_b32 v67, 7, %s' % v(vLane))
    for base in (GFLAG, KFLAG):
        for i in range(4):
            A('s_mov_b32 %s, 0x%x' % (s(sT1), base + i * 2048))
            A('buffer_store_dwordx4 v[68:71], v65, %s, %s offen sc0 sc1' % (s(SWS, 4), s(sT1)))
    for i in range(4):
        A('s_mov_b32 %s, 0x%x' % (s(sT1), HFLAG + i * 8192))
        A('buffer_store_dwordx4 v[68:71], v67, %s, %s offen sc0 sc1' % (s(SWS, 4), s(sT1)))
    A('s_waitcnt vmcnt(0)')
    A('v_mov_b32 v68, 1')
    A('s_mov_b64 exec, 1')
    A('buffer_store_dword v68, off, %s, 0 sc0 sc1' % s(SDBG, 4))
    A('s_mov_b64 exec, -1')
    A.label(Lnz)
    wait_all(lg=False)
    for j in range(2):
        A('s_add_u32 %s, %s, %d' % (s(sT3), s(sT2), j))
        A('s_lshl_b32 %s, %s, 15' % (s(sT0), s(sT3)))
        A('s_lshl_b32 %s, %s, 11' % (s(sT1), s(sC)))
        A('s_add_u32 %s, %s, %s' % (s(sT0), s(sT0), s(sT1)))
        A('s_lshl_b32 %s, %s, 12' % (s(sT3), s(sT3)))
        publish_x(vX + 8 * j)
    A('v_mov_b32 v64, 0')
    A('s_mov_b32 %s, 1' % s(sT1))
    poll(64, SDBG, sT1, 65)
    for j in range(2):
        A('s_add_u32 %s, %s, %d' % (s(sT3), s(sT2), j))
        A('s_lshl_b32 %s, %s, 7' % (s(sT3), s(sT3)))
        A('s_lshl_b32 %s, %s, 2' % (s(sT0), s(sC)))
        A('s_add_u32 %s, %s, %s' % (s(sT3), s(sT3), s(sT0)))
        A('s_add_u32 %s, %s, 0x%x' % (s(sT3), s(sT3), GFLAG))
        flag_g(sT3)
    A('s_branch %s' % Lj)
    A.label(Ldma)
    A('s_sub_u32 %s, %s, 2' % (s(sT0), s(sW)))
    A('s_mul_i32 %s, %s, 49152' % (s(sDma), s(sT0)))
    A('s_lshl_b32 %s, %s, 10' % (s(sM0), s(sT0)))
    for tile in (1, 2, 0):
        for blk in range(16):
            emit_dma(dma_w(SWQA, tile, blk, nwaves_log=1))
    A('s_lshl_b32 %s, %s, 14' % (s(sT1), s(sT0)))
    for blk in range(16):
        A('s_add_u32 %s, %s, 0x%x' % (s(sT2), s(sT1), blk * 32768))
        A('s_add_u32 m0, %s, 0x%x' % (s(sM0), L_KV + blk * 2048))
        vmem('buffer_load_dwordx4 v66, %s, %s offen lds' % (s(SWOA, 4), s(sT2)))
    A.label(Lj)
    A('s_mul_i32 %s, %s, 49152' % (s(sDma), s(sW)))
    A('s_lshl_b32 %s, %s, 10' % (s(sM0), s(sW)))
    A('s_lshl_b32 %s, %s, 15' % (s(sXb), s(sT)))
    A('s_lshl_b32 %s, %s, 11' % (s(sOwn), s(sC)))
    A('s_add_u32 %s, %s, %s' % (s(sOwn), s(sOwn), s(sXb)))
    A('v_lshrrev_b32 v64, 5, %s' % v(vLane)); A('v_lshlrev_b32 %s, 8, v64' % v(vW0))
    A('v_bfe_u32 v65, %s, 2, 2' % v(vLane)); A('v_lshl_add_u32 %s, v65, 6, %s' % (v(vW0), v(vW0)))
    A('v_bfe_u32 v65, %s, 4, 1' % v(vLane)); A('v_lshl_add_u32 %s, v65, 5, %s' % (v(vW0), v(vW0)))
    A('v_and_b32 v65, 3, %s' % v(vLane)); A('v_lshl_add_u32 %s, v65, 3, %s' % (v(vW0), v(vW0)))
    A('v_add_u32 %s, 0x10000, %s' % (v(vW2), v(vW0)))
    A('s_lshl_b32 %s, %s, 7' % (s(sT0), s(sT))); A('s_add_u32 %s, %s, 0x%x' % (s(sT0), s(sT0), GFLAG))
    A('v_and_b32 v65, 15, %s' % v(vLane)); A('v_lshlrev_b32 v65, 2, v65'); A('v_add_u32 %s, %s, v65' % (v(vFlagG), s(sT0)))
    A('s_lshl_b32 %s, %s, 12' % (s(sT0), s(sW))); A('s_add_u32 %s, %s, %d' % (s(sT0), s(sT0), L_KV))
    A('v_add_u32 %s, %s, %s' % (v(vKV), s(sT0), v(vL16)))
    A('v_and_b32 v65, 31, %s' % v(vLane)); A('v_lshlrev_b32 v64, 2, v64'); A('v_sub_u32 v65, v65, v64')
    for r in range(16):
        A('v_cmp_le_i32 %s, %d, v65' % (s(sMASK + 2 * r, 2), (r & 3) + 8 * (r >> 2)))
    A('s_mov_b32 %s, 0xffff' % s(sHALF)); A('s_mov_b32 %s, 0xffff' % s(sHALF + 1))
    A('s_mov_b32 %s, 0x%08x' % (s(sQS), f2u(0.25 * math.log2(math.e))))
    A('s_mov_b32 %s, 0x%08x' % (s(sEPS), f2u(1e-5)))
    A('s_mov_b32 %s, 0xff800000' % s(sNEG))
    A('s_mov_b32 %s, 0' % s(sCPh))

import struct
def f2u(x): return struct.unpack('<I', struct.pack('<f', x))[0]

def preslot(typ):
    wait_all()
    barrier()
    Ls = newlab('skipcs')
    A('s_cmp_lg_u32 %s, 0' % s(sIter))
    A('s_cbranch_scc1 %s' % Ls)
    A('s_lshl_b32 %s, %s, 13' % (s(sT0), s(sW)))
    A('v_add_u32 v64, %s, %s' % (s(sT0), v(vW0)))
    A('v_add_u32 v65, %s, %s' % (s(sT0), v(vW2)))
    A('v_add_u32 v66, 0x%x, %s' % (L_KV, v(vW0)))
    for t in range(3): A('v_mov_b32 %s, 0' % v(68 + t))
    toks = {}
    for t in range(3):
        for k in range(8):
            base, off = (64, t * 32768) if t < 2 else (65, 0)
            d = vX + (t * 8 + k) * 4
            lds('ds_read_b64_tr_b16 %s, %s offset:%d' % (v(d, 2), v(base), off + k * 1024))
            toks[(t, k)] = lds('ds_read_b64_tr_b16 %s, %s offset:%d' % (v(d + 2, 2), v(base), off + k * 1024 + 512))
    ab = 128 * typ
    nks = 32
    idx = 0
    for t in range(3):
        for k in range(8):
            wait(lg=toks[(t, k)])
            d = vX + (t * 8 + k) * 4
            for j in range(4):
                A('v_dot2c_f32_bf16 %s, %s, %s' % (v(68 + t), s(sONE), v(d + j)))
    for ks in range(nks):
        lds('ds_read_b64_tr_b16 %s, v66 offset:%d' % (a(ab + 4 * ks, 2), ks * 1024))
        lds('ds_read_b64_tr_b16 %s, v66 offset:%d' % (a(ab + 4 * ks + 2, 2), ks * 1024 + 512))
    A('v_and_b32 v64, 31, %s' % v(vLane)); A('v_lshlrev_b32 v64, 5, v64')
    A('v_lshrrev_b32 v65, 5, %s' % v(vLane)); A('v_lshl_add_u32 v65, v65, 2, v64')
    A('s_lshl_b32 %s, %s, 3' % (s(sT0), s(sW)))
    A('v_add_u32 v65, %s, v65' % s(sT0))
    A('v_add_u32 v65, 0x%x, v65' % L_CSP)
    A('v_add_u32 v64, 0x%x, v64' % L_CSP)
    for t in range(3):
        lds('ds_write_b32 v65, %s offset:%d' % (v(68 + t), t * 1024))
    wait_all(vm=False)
    barrier()
    for t in range(3):
        lds('ds_read_b128 %s, v64 offset:%d' % (v(vX + 8 * t, 4), t * 1024))
        lds('ds_read_b128 %s, v64 offset:%d' % (v(vX + 8 * t + 4, 4), t * 1024 + 16))
    A('v_and_b32 v65, 31, %s' % v(vLane)); A('v_lshlrev_b32 v65, 2, v65')
    A('v_add_u32 v65, 0x%x, v65' % (L_CS + typ * 384))
    wait_all(vm=False)
    for t in range(3):
        b = vX + 8 * t
        A('v_pk_add_f32 %s, %s, %s' % (v(b, 2), v(b, 2), v(b + 2, 2)))
        A('v_pk_add_f32 %s, %s, %s' % (v(b + 4, 2), v(b + 4, 2), v(b + 6, 2)))
        A('v_pk_add_f32 %s, %s, %s' % (v(b, 2), v(b, 2), v(b + 4, 2)))
        A('v_add_f32 %s, %s, %s' % (v(b), v(b), v(b + 1)))
        lds('ds_write_b32 v65, %s offset:%d' % (v(b), t * 128))
    wait_all(vm=False)
    A.label(Ls)


def ln_T(acc, cs, rs, mr):
    for p in range(8):
        A('v_pk_mul_f32 %s, %s, %s op_sel_hi:[1,0]' % (v(acc + 2 * p, 2), v(acc + 2 * p, 2), v(rs, 2)))
    for p in range(8):
        A('v_pk_fma_f32 %s, %s, %s, %s op_sel_hi:[1,0,1] neg_lo:[0,1,0] neg_hi:[0,1,0]' % (v(acc + 2 * p, 2), v(cs + 2 * p, 2), v(mr, 2), v(acc + 2 * p, 2)))
def ln_N(acc, csn):
    for p in range(8):
        A('v_pk_mul_f32 %s, %s, %s' % (v(acc + 2 * p, 2), v(acc + 2 * p, 2), v(vRSB + 2 * p, 2)))
    for p in range(8):
        A('v_pk_fma_f32 %s, %s, %s, %s op_sel_hi:[1,0,1] neg_lo:[0,1,0] neg_hi:[0,1,0]' % (v(acc + 2 * p, 2), v(vMRB + 2 * p, 2), v(csn, 2), v(acc + 2 * p, 2)))
def pack(acc, dst=None):
    dst = acc if dst is None else dst
    for d in range(8):
        A('v_cvt_pk_bf16_f32 %s, %s, %s' % (v(dst + d), v(acc + 2 * d), v(acc + 2 * d + 1)))
def phi(acc, tmp):
    A('s_mov_b32 %s, 0x%08x' % (s(sT0), f2u(math.log2(math.e))))
    A('s_mov_b32 %s, 0x%08x' % (s(sT1), f2u(math.log2(math.e))))
    A('s_mov_b32 %s, 0x%08x' % (s(sT2), f2u(1e-6)))
    A('s_mov_b32 %s, 0x%08x' % (s(sT3), f2u(1e-6)))
    for p in range(8):
        A('v_pk_mul_f32 %s, %s, %s' % (v(tmp + 2 * p, 2), v(acc + 2 * p, 2), s(sT0, 2)))
    for r in range(16):
        A('v_exp_f32_e64 %s, %s clamp' % (v(tmp + r), v(tmp + r)))
        A('v_max_f32 %s, 0, %s' % (v(acc + r), v(acc + r)))
    for p in range(8):
        A('v_pk_add_f32 %s, %s, %s' % (v(acc + 2 * p, 2), v(acc + 2 * p, 2), v(tmp + 2 * p, 2)))
    for p in range(8):
        A('v_pk_add_f32 %s, %s, %s' % (v(acc + 2 * p, 2), v(acc + 2 * p, 2), s(sT2, 2)))

vRstd, vMr, vCsV, vCsK = 88, 90, 92, 94

def qkv(typ):
    poll(vFlagG, SWS, sPh, 64)
    if typ == 0:
        Lf = newlab('nofast')
        A('s_cmp_lg_u32 %s, 0' % s(sIter))
        A('s_cbranch_scc1 %s' % Lf)
        A('v_and_b32 v64, 0xff, v64')
        A('v_cmp_eq_u32 vcc, %s, v64' % s(sXcc))
        A('s_cmp_eq_u64 vcc, exec')
        A('s_cselect_b32 %s, %d, 0' % (s(sFast), 0 if FORCE_SLOW else 1))
        A.label(Lf)
    A('s_add_u32 %s, %s, 0x100' % (s(sPh), s(sPh)))
    stamp('xpoll%d' % typ)
    st = {}
    def ld_stats():
        A('s_lshl_b32 %s, %s, 12' % (s(sT1), s(sT))); A('s_add_u32 %s, %s, 0x%x' % (s(sT1), s(sT1), XSTAT))
        for j in range(4):
            st['tok'] = vmem('buffer_load_dwordx4 %s, %s, %s, %s offen offset:%d sc1' % (v(96 + 4 * j, 4), v(vL16), s(SWS, 4), s(sT1), j * 1024))
    def ld_res():
        for j in range(2):
            st['res'] = vmem('buffer_load_dwordx4 %s, %s, %s, %s offen offset:%d sc1' % (v(vRES + 4 * j, 4), v(vL16), s(SWS, 4), s(sOwn), j * 1024))
    ring = lambda ks: vT + 8 * (ks % 3)
    wt = {}
    xt = gather(sXb, extra={7: ld_stats, 31: ld_res})
    for ks in range(2):
        wfrag(ring(ks), 1, ks); wt[ks] = wfrag(ring(ks) + 4, 2, ks)
    fill = {}
    def add(slot, fn): fill.setdefault(slot, []).append(fn)
    def statsA():
        wait(vm=st['tok'])
        for j in range(4): A('v_pk_add_f32 %s, %s, %s' % (v(96 + 4 * j, 2), v(96 + 4 * j, 2), v(98 + 4 * j, 2)))
    def statsB():
        A('v_pk_add_f32 v[96:97], v[96:97], v[100:101]'); A('v_pk_add_f32 v[104:105], v[104:105], v[108:109]')
        A('v_pk_add_f32 v[96:97], v[96:97], v[104:105]')
        A('v_mov_b32 v98, v96'); A('v_mov_b32 v99, v97')
    def statsC():
        A('v_permlane32_swap_b32 v98, v96'); A('v_permlane32_swap_b32 v99, v97')
        A('v_pk_add_f32 v[96:97], v[96:97], v[98:99]')
        A('v_mul_f32 v96, 0x%08x, v96' % f2u(1 / 512)); A('v_mul_f32 v97, 0x%08x, v97' % f2u(1 / 512))
    def statsD():
        A('v_fma_f32 v97, -v96, v96, v97')
        A('v_max_f32 v97, 0, v97')
        A('v_add_f32 v97, %s, v97' % s(sEPS))
        A('v_rsq_f32 %s, v97' % v(vRstd))
    def statsE():
        A('v_mul_f32 %s, v96, %s' % (v(vMr), v(vRstd)))
        A('s_lshl_b32 %s, %s, 8' % (s(sT1), s(sW))); A('s_add_u32 %s, %s, %d' % (s(sT1), s(sT1), L_ROW))
        A('v_lshl_add_u32 v98, %s, 2, %s' % (v(vLane), s(sT1)))
        A('v_cndmask_b32 v99, %s, %s, %s' % (v(vRstd), v(vMr), s(sUP, 2)))
    def statsF():
        st['w'] = lds('ds_write_b32 v98, v99')
        A('v_lshrrev_b32 v89, 5, %s' % v(vLane))
        A('v_lshl_add_u32 v89, v89, 4, %s' % s(sT1))
        A('v_lshrrev_b32 v91, 5, %s' % v(vLane))
        A('v_lshlrev_b32 v91, 4, v91')
        A('v_add_u32 v91, 0x%x, v91' % (L_CS + typ * 384))
    def statsG(i):
        def f():
            lds('ds_read_b128 %s, v89 offset:%d' % (v(vRSB + 4 * i, 4), i * 32))
            st['bc'] = lds('ds_read_b128 %s, v89 offset:%d' % (v(vMRB + 4 * i, 4), 128 + i * 32))
        return f
    def statsH():
        A('v_and_b32 v93, 31, %s' % v(vLane)); A('v_lshlrev_b32 v93, 2, v93')
        A('v_add_u32 v93, 0x%x, v93' % (L_CS + typ * 384))
        st['bc'] = lds('ds_read_b32 %s, v93 offset:256' % v(vCsV))
        if typ == 1: st['bc'] = lds('ds_read_b32 %s, v93 offset:128' % v(vCsK))
    def statsI(i):
        def f():
            st['bc'] = lds('ds_read_b128 %s, v91 offset:%d' % (v(vCSA + 4 * i, 4), 128 + i * 32))
        return f
    seq = [statsA, statsB, statsC, statsD, statsE, statsF] + [statsG(i) for i in range(4)] + [statsH]
    if typ == 0: seq += [statsI(i) for i in range(4)]
    for i, f in enumerate(seq): add(24 + 2 * i, f)
    slot = 0
    for ks in range(32):
        if ks + 2 < 32:
            wfrag(ring(ks + 2), 1, ks + 2); wt[ks + 2] = wfrag(ring(ks + 2) + 4, 2, ks + 2)
        wait(vm=xt[ks], lg=wt[ks])
        X = v(vX + 4 * ks, 4); Wk = v(ring(ks), 4); Wv = v(ring(ks) + 4, 4)
        cK = '0' if ks == 0 else v(vAK, 16); cV = '0' if ks == 0 else v(vAV, 16)
        if typ == 0: mfma(v(vAK, 16), Wk, X, cK)
        else: mfma(v(vAK, 16), X, Wk, cK)
        for f in fill.get(slot, []): f()
        slot += 1
        mfma(v(vAV, 16), X, Wv, cV)
        for f in fill.get(slot, []): f()
        slot += 1
    ring2 = lambda ks: vT + 4 * (ks % 4)
    wq = {}
    for ks in range(3): wq[ks] = wfrag(ring2(ks), 0, ks)
    wait(lg=st['bc'])
    stamp('pass1_%d' % typ)
    if typ == 0:
        ln_T(vAK, vCSA, vRstd, vMr)
        pack(vAK)
    else:
        ln_N(vAK, vCsK)
    ln_N(vAV, vCsV)
    pack(vAV)
    return wq, ring2, st

def pass2(wq, ring2, fill):
    for ks in range(32):
        if ks + 3 < 32: wq[ks + 3] = wfrag(ring2(ks + 3), 0, ks + 3)
        wait(lg=wq[ks])
        mfma(v(vAQ, 16), v(ring2(ks), 4), v(vX + 4 * ks, 4), '0' if ks == 0 else v(vAQ, 16))
        for f in fill.get(ks, []): f()

def csq_fill(fill, st, at):
    for i in range(4):
        def f(i=i):
            st['csq'] = lds('ds_read_b128 %s, v91 offset:%d' % (v(vCSA + 4 * i, 4), i * 32))
        fill.setdefault(at + i, []).append(f)

def layerA():
    preslot(0)
    stamp('pre0')
    wq, ring2, st = qkv(0)
    A('s_lshl_b32 %s, %s, 4' % (s(sT0), s(sT))); A('s_add_u32 %s, %s, %s' % (s(sT0), s(sT0), s(sC)))
    A('s_lshl_b32 %s, %s, 12' % (s(sT0), s(sT0))); A('s_add_u32 %s, %s, 0x%x' % (s(sT0), s(sT0), KVBUF))
    srcs = [vAK, vAK + 4, vAV, vAV + 4]
    for j in range(4):
        kvtok = vmem('buffer_store_dwordx4 %s, %s, %s, %s offen offset:%d sc0 sc1' % (v(srcs[j], 4), v(vL16), s(SWS, 4), s(sT0), j * 1024))
    for j in range(4):
        lds('ds_write_b128 %s, %s offset:%d' % (v(vKV), v(srcs[j], 4), 32768 + j * 1024))
    A('s_add_u32 %s, %s, 1' % (s(sCPh), s(sCPh)))
    fill = {}
    csq_fill(fill, st, 2)
    def flagH():
        wait(vm=kvtok)
        A('s_lshl_b32 %s, %s, 4' % (s(sT0), s(sC))); A('s_add_u32 %s, %s, %s' % (s(sT0), s(sT0), s(sR)))
        A('s_lshl_b32 %s, %s, 5' % (s(sT0), s(sT0))); A('s_add_u32 %s, %s, %s' % (s(sT0), s(sT0), s(sW)))
        A('s_lshl_b32 %s, %s, 2' % (s(sT0), s(sT0))); A('s_add_u32 %s, %s, 0x%x' % (s(sT0), s(sT0), HFLAG))
        A('v_mov_b32 v96, %s' % s(sCPh))
        A('s_mov_b64 exec, 1')
        vmem('buffer_store_dword v96, off, %s, %s sc0 sc1' % (s(SWS, 4), s(sT0)))
        A('s_mov_b64 exec, -1')
    fill.setdefault(22, []).append(flagH)
    def qs():
        A('v_mul_f32 %s, %s, %s' % (v(vRstd), s(sQS), v(vRstd)))
        A('v_mul_f32 %s, %s, %s' % (v(vMr), s(sQS), v(vMr)))
    fill.setdefault(1, []).append(qs)
    pass2(wq, ring2, fill)
    wait(lg=st['csq'])
    ln_T(vAQ, vCSA, vRstd, vMr)
    pack(vAQ)
    stamp('pass2_0')
    if STOP == 1:
        A('s_add_u32 %s, %s, 0x%x' % (s(sHalo0), s(sOwn), OBUF))
        A('buffer_store_dwordx4 v[16:19], %s, %s, %s offen' % (v(vL16), s(SWS, 4), s(sHalo0)))
        A('buffer_store_dwordx4 v[20:23], %s, %s, %s offen offset:1024' % (v(vL16), s(SWS, 4), s(sHalo0)))
    ckpt(1)
    A('s_lshr_b32 %s, %s, 1' % (s(sT0), s(sW)))
    A('s_add_u32 %s, %s, %s' % (s(sT0), s(sT0), s(sR)))
    Lno = newlab('nohalo'); Lh = newlab('halo')
    A('s_mov_b32 %s, 0x%x' % (s(sHalo0), OOB))
    A('s_cmp_lt_u32 %s, 2' % s(sT0))
    A('s_cbranch_scc1 %s' % Lno)
    A('s_sub_u32 %s, %s, 2' % (s(sT0), s(sT0)))
    A('s_lshl_b32 %s, %s, 4' % (s(sT1), s(sC))); A('s_add_u32 %s, %s, %s' % (s(sT1), s(sT1), s(sT0)))
    A('s_lshl_b32 %s, %s, 7' % (s(sT1), s(sT1))); A('s_add_u32 %s, %s, 0x%x' % (s(sT1), s(sT1), HFLAG))
    A('s_and_b32 %s, %s, 1' % (s(sT2), s(sW))); A('s_lshl_b32 %s, %s, 3' % (s(sT3), s(sT2))); A('s_add_u32 %s, %s, %s' % (s(sT1), s(sT1), s(sT3)))
    A('v_and_b32 v96, 1, %s' % v(vLane)); A('v_lshlrev_b32 v96, 2, v96')
    A('s_lshl_b32 %s, %s, 2' % (s(sT0), s(sT0))); A('s_lshl_b32 %s, %s, 1' % (s(sT2), s(sT2))); A('s_add_u32 %s, %s, %s' % (s(sT0), s(sT0), s(sT2)))
    A('s_lshl_b32 %s, %s, 4' % (s(sT0), s(sT0))); A('s_add_u32 %s, %s, %s' % (s(sT0), s(sT0), s(sC)))
    A('s_lshl_b32 %s, %s, 12' % (s(sT0), s(sT0))); A('s_add_u32 %s, %s, 0x%x' % (s(sHalo0), s(sT0), KVBUF))
    poll(96, SWS, sCPh, 97, soff=s(sT1))
    A.label(Lno)
    VM.reset()
    A('s_add_u32 %s, %s, 65536' % (s(sHalo1), s(sHalo0)))
    A('s_lshl_b32 %s, %s, 13' % (s(sT0), s(sW)))
    for i in range(2):
        A('s_add_u32 m0, %s, %d' % (s(sT0), L_KV + i * 4096))
        for j in range(4):
            vmem('buffer_load_dwordx4 %s, %s, %s offen offset:%d sc1 lds' % (v(vL16), s(SWS, 4), s(sHalo0 + i), j * 1024))
    stamp('halopoll')
    PM = 24; VR = 32; OA = 48; KF = 64
    A('v_mov_b32 v100, 0xffff'); A('v_mov_b32 v101, 0xffff0000')
    for d in range(8):
        A('v_cndmask_b32 %s, 0, v100, %s' % (v(PM + d), s(sMASK + 4 * d, 2)))
        A('v_cndmask_b32 v102, 0, v101, %s' % s(sMASK + 4 * d + 2, 2))
        A('v_or_b32 %s, %s, v102' % (v(PM + d), v(PM + d)))
    for i in range(16): A('v_mov_b32 %s, %s' % (v(VR + i), s(sONE)))
    A('v_mov_b32 v104, %s' % v(vKV))
    A('v_add_u32 v105, 2048, %s' % v(vKV))
    A('s_add_u32 %s, %s, 0x%x' % (s(sHalo0), s(sOwn), OBUF))
    A('s_mov_b32 %s, 0' % s(sHalo1))
    wait_all()
    barrier()
    stamp('halo')
    Lu = newlab('unit')
    A.label(Lu)
    T = lambda j: 112 + 16 * j
    order = [0, 8, 1, 2, 3, 4, 5, 6, 7]
    kt = {}
    for j in order:
        kt[j] = lds('ds_read_b128 %s, v104 offset:%d' % (v(KF + 4 * j, 4), j * 4096))
    def dma_unit(i):
        tile, b = divmod(i, 4)
        A('s_lshl_b32 %s, %s, 2' % (s(sT0), s(sHalo1)))
        A('s_add_u32 %s, %s, %d' % (s(sT0), s(sT0), b))
        A('s_mul_i32 %s, %s, %d' % (s(sT2), s(sT0), 4 * 49152))
        A('s_add_u32 %s, %s, %s' % (s(sT2), s(sT2), s(sDma)))
        A('s_add_u32 %s, %s, %d' % (s(sT2), s(sT2), tile * 1024))
        A('s_lshl_b32 %s, %s, 12' % (s(sT0), s(sT0)))
        A('s_add_u32 %s, %s, %s' % (s(sT0), s(sT0), s(sM0)))
        A('s_add_u32 m0, %s, %d' % (s(sT0), L_W + tile * 32768))
        vmem('buffer_load_dwordx4 %s, %s, %s offen lds' % (v(vDmaW), s(SWQB, 4), s(sT2)))
    def vload(j, slot):
        A('s_mov_b64 exec, %s' % s(sHALF, 2))
        lds('ds_read_b128 %s, v105 offset:%d' % (v(VR + 8 * slot, 4), j * 4096))
        t = lds('ds_read_b128 %s, v105 offset:%d' % (v(VR + 8 * slot + 4, 4), j * 4096 + 1024))
        A('s_mov_b64 exec, -1')
        return t
    for j in order:
        wait(lg=kt[j])
        mfma(v(T(j), 16), v(KF + 4 * j, 4), v(vAQ, 4), '0')
    Lv = newlab('valid')
    A('s_cmp_ge_u32 %s, 8' % s(sT))
    A('s_cbranch_scc1 %s' % Lv)
    A('v_mov_b32 v102, %s' % s(sNEG)); A('v_mov_b32 v103, %s' % s(sNEG))
    for j in range(8):
        if j > 0:
            A('s_cmp_ge_u32 %s, %d' % (s(sT), 8 - j))
            A('s_cbranch_scc1 %s' % Lv)
        for p in range(8):
            A('v_pk_mov_b32 %s, v[102:103], v[102:103]' % v(T(j) + 2 * p, 2))
    A.label(Lv)
    vt = {}
    vt[1] = vload(1, 0); vt[2] = vload(2, 1)
    for r in range(16):
        A('v_cndmask_b32 %s, %s, %s, %s' % (v(T(8) + r), v(T(0) + r), v(T(8) + r), s(sMASK + 2 * r, 2)))
    regs = [T(j) + r for j in [8, 1, 2, 3, 4, 5, 6, 7] for r in range(16)]
    M = 100
    for ch in range(2):
        A('v_max_f32 %s, %s, %s' % (v(M + ch), v(regs[2 * ch]), v(regs[2 * ch + 1])))
    i = 4; ch = 0
    while i < 128:
        A('v_max3_f32 %s, %s, %s, %s' % (v(M + ch), v(M + ch), v(regs[i]), v(regs[i + 1])))
        i += 2; ch ^= 1
    A('v_max_f32 v100, v100, v101')
    A('v_mov_b32 v101, v100')
    A('v_permlane32_swap_b32 v101, v100')
    A('v_max_f32 v100, v100, v101')
    def expo(j):
        b = T(j)
        for p in range(8):
            A('v_pk_add_f32 %s, %s, v[100:101] op_sel_hi:[1,0] neg_lo:[0,1] neg_hi:[0,1]' % (v(b + 2 * p, 2), v(b + 2 * p, 2)))
        for r in range(16):
            A('v_exp_f32 %s, %s' % (v(b + r), v(b + r)))
        for d in range(8):
            A('v_cvt_pk_bf16_f32 %s, %s, %s' % (v(b + d), v(b + 2 * d), v(b + 2 * d + 1)))
    first = True
    seq = [1, 2, 3, 4, 5, 6, 7, 8]
    nd = 0
    for n, j in enumerate(seq):
        expo(j)
        slot = n % 2
        if j < 8:
            wait(lg=vt[j])
            mfma(v(OA, 16), v(VR + 8 * slot, 4), v(T(j), 4), '0' if first else v(OA, 16)); first = False
            mfma(v(OA, 16), v(VR + 8 * slot + 4, 4), v(T(j) + 4, 4), v(OA, 16))
            nj = j + 2
            if nj <= 8: vt[nj] = vload(nj, slot)
            elif nj == 9: vt[0] = vload(0, slot)
            for _ in range(2):
                if nd < 12: dma_unit(nd); nd += 1
        else:
            for d in range(8):
                A('v_bfi_b32 %s, %s, 0, %s' % (v(T(0) + d), v(PM + d), v(T(8) + d)))
                A('v_and_b32 %s, %s, %s' % (v(T(8) + d), v(PM + d), v(T(8) + d)))
            wait(lg=vt[0])
            mfma(v(OA, 16), v(VR + 8 * slot, 4), v(T(8), 4), v(OA, 16))
            mfma(v(OA, 16), v(VR + 8 * slot + 4, 4), v(T(8) + 4, 4), v(OA, 16))
            mfma(v(OA, 16), v(VR + 8 * (1 - slot), 4), v(T(0), 4), v(OA, 16))
            mfma(v(OA, 16), v(VR + 8 * (1 - slot) + 4, 4), v(T(0) + 4, 4), v(OA, 16))
    for i in range(4): A('v_mov_b32 %s, %s' % (v(vAQ + i), v(vAQ + 4 + i)))
    A('v_add_u32 v104, 1024, v104'); A('v_add_u32 v105, 256, v105')
    A('v_rcp_f32 v102, %s' % v(OA + 8))
    for p in range(4):
        A('v_pk_mul_f32 %s, %s, v[102:103] op_sel_hi:[1,0]' % (v(OA + 2 * p, 2), v(OA + 2 * p, 2)))
    for d in range(4):
        A('v_cvt_pk_bf16_f32 %s, %s, %s' % (v(96 + d), v(OA + 2 * d), v(OA + 2 * d + 1)))
    def sto(sc):
        vmem('buffer_store_dwordx4 v[96:99], %s, %s, %s offen%s' % (v(vL16), s(SWS, 4), s(sHalo0), sc))
    dual(sto)
    A('s_add_u32 %s, %s, 1024' % (s(sHalo0), s(sHalo0)))
    A('s_add_u32 %s, %s, 1' % (s(sHalo1), s(sHalo1)))
    A('s_cmp_lt_u32 %s, 2' % s(sHalo1))
    A('s_cbranch_scc1 %s' % Lu)
    LG.reset()
    stamp('attn')
    ckpt(2)
    wo_phase(0)

def own_flag_off():
    A('s_lshl_b32 %s, %s, 7' % (s(sT3), s(sT)))
    A('s_lshl_b32 %s, %s, 2' % (s(sT0), s(sC)))
    A('s_add_u32 %s, %s, %s' % (s(sT3), s(sT3), s(sT0)))
    A('s_add_u32 %s, %s, 0x%x' % (s(sT3), s(sT3), GFLAG))

def wo_phase(typ):
    own_flag_off()
    wait_all(lg=False)
    flag_g(sT3)
    for d in range(8):
        A('v_lshlrev_b32 %s, 16, %s' % (v(vAQ + 2 * d), v(vRES + d)))
        A('v_and_b32 %s, 0xffff0000, %s' % (v(vAQ + 2 * d + 1), v(vRES + d)))
    if typ == 0:
        barrier()
    poll(vFlagG, SWS, sPh, 64)
    A('s_add_u32 %s, %s, 0x100' % (s(sPh), s(sPh)))
    stamp('opoll%d' % typ)
    A('s_add_u32 %s, %s, 0x%x' % (s(sT1), s(sXb), OBUF))
    xt = gather(sT1)
    n_before = VM.n
    if typ == 0:
        Ls = newlab('nowob')
        A('s_cmp_lg_u32 %s, 0' % s(sIter))
        A('s_cbranch_scc1 %s' % Ls)
        A('v_lshrrev_b32 v64, 2, %s' % v(vLane)); A('v_lshlrev_b32 v64, 11, v64'); A('v_sub_u32 v64, %s, v64' % v(vDmaW))
        A('s_lshl_b32 %s, %s, 14' % (s(sT1), s(sW)))
        for blk in range(8):
            A('s_add_u32 %s, %s, 0x%x' % (s(sT2), s(sT1), blk * 65536))
            A('s_add_u32 m0, %s, 0x%x' % (s(sM0), L_KV + blk * 4096))
            A('buffer_load_dwordx4 v64, %s, %s offen lds' % (s(SWOB, 4), s(sT2)))
        A('s_waitcnt vmcnt(8)')
        for ks in range(32):
            mfma(v(vAQ, 16), a(4 * ks, 4), v(vX + 4 * ks, 4), v(vAQ, 16))
        Le = newlab('woe')
        A('s_branch %s' % Le)
        A.label(Ls)
    else:
        for blk in range(8):
            emit_dma(dma_w(SWQA, 0, blk))
    ab = 128 * typ
    for ks in range(32):
        wait(vm=xt[ks])
        mfma(v(vAQ, 16), a(ab + 4 * ks, 4), v(vX + 4 * ks, 4), v(vAQ, 16))
    if typ == 0: A.label(Le)
    pack(vAQ)
    stamp('wo%d' % typ)
    if typ == 1:
        A('s_cmp_lg_u32 %s, 0' % s(sIter))
        A('s_cbranch_scc1 L_final')
    A('s_mov_b32 %s, %s' % (s(sT0), s(sOwn)))
    A('s_lshl_b32 %s, %s, 12' % (s(sT3), s(sT)))
    publish_x(vAQ)
    own_flag_off()
    wait_all(lg=False)
    flag_g(sT3)
    stamp('xpub%d' % typ)
    ckpt(3 + 3 * typ)

def layerB():
    preslot(1)
    stamp('pre1')
    wq, ring2, st = qkv(1)
    phi(vAK, 96)
    pack(vAK)
    for i in range(4): A('v_mov_b32 %s, %s' % (v(40 + i), s(sONE)))
    D1, D2 = 96, 112
    mfma(v(D1, 16), v(vAK, 4), v(vAV, 4), '0')
    mfma(v(D2, 16), v(vAK, 4), v(40, 4), '0')
    mfma(v(D1, 16), v(vAK + 4, 4), v(vAV + 4, 4), v(D1, 16))
    mfma(v(D2, 16), v(vAK + 4, 4), v(40, 4), v(D2, 16))
    for j in range(8):
        A('v_cndmask_b32 %s, %s, %s, %s' % (v(32 + j), v(D1 + 8 + j), v(D1 + j), s(sHALF, 2)))
    for j in range(8):
        A('v_cndmask_b32 %s, %s, %s, %s' % (v(40 + j), v(D2 + j), v(D2 + 8 + j), s(sHALF, 2)))
    for p in range(4):
        lds('ds_write_b128 %s, %s offset:%d' % (v(vKV), v(32 + 4 * p, 4), p * 1024))
    A('s_lshl_b32 %s, %s, 10' % (s(sT0), s(sW))); A('s_add_u32 %s, %s, %d' % (s(sT0), s(sT0), L_KV))
    A('v_add_u32 v48, %s, %s' % (s(sT0), v(vL16)))
    A('v_lshrrev_b32 v49, 4, %s' % v(vLane)); A('v_lshlrev_b32 v49, 5, v49')
    A('s_lshl_b32 %s, %s, 4' % (s(sT1), s(sW))); A('s_add_u32 %s, %s, %d' % (s(sT1), s(sT1), 2048 - 32))
    A('v_add_u32 v49, %s, v49' % s(sT1))
    A('s_lshl_b32 %s, %s, 10' % (s(sT1), s(sW)))
    A('v_add_u32 v50, %s, %s' % (s(sT1), v(vL16)))
    A('s_cmp_lt_u32 %s, 2' % s(sW))
    A('s_cselect_b64 vcc, -1, 0')
    A('v_cndmask_b32 v49, v49, v50, vcc')
    wait_all(vm=False)
    barrier()
    for j in range(4):
        t = lds('ds_read_b128 %s, v48 offset:%d' % (v(96 + 4 * j, 4), j * 4096))
    A('s_lshl_b32 %s, %s, 20' % (s(sLkv), s(sIter))); A('s_lshl_b32 %s, %s, 16' % (s(sT0), s(sC)))
    A('s_add_u32 %s, %s, %s' % (s(sLkv), s(sLkv), s(sT0))); A('s_add_u32 %s, %s, 0x%x' % (s(sLkv), s(sLkv), LKV))
    A('s_lshl_b32 %s, %s, 12' % (s(sT0), s(sR))); A('s_add_u32 %s, %s, %s' % (s(sT0), s(sT0), s(sLkv)))
    wait(lg=t)
    A('v_pk_add_f32 v[96:97], v[96:97], v[100:101]'); A('v_pk_add_f32 v[98:99], v[98:99], v[102:103]')
    A('v_pk_add_f32 v[104:105], v[104:105], v[108:109]'); A('v_pk_add_f32 v[106:107], v[106:107], v[110:111]')
    A('v_pk_add_f32 v[96:97], v[96:97], v[104:105]'); A('v_pk_add_f32 v[98:99], v[98:99], v[106:107]')
    kvtok = vmem('buffer_store_dwordx4 v[96:99], v49, %s, %s offen sc0 sc1' % (s(SWS, 4), s(sT0)))
    A('s_add_u32 %s, %s, 1' % (s(sCPh), s(sCPh)))
    stamp('kvpub')
    fill = {}
    csq_fill(fill, st, 2)
    def flagK():
        wait(vm=kvtok)
        A('s_lshl_b32 %s, %s, 2' % (s(sT0), s(sC))); A('s_add_u32 %s, %s, %s' % (s(sT0), s(sT0), s(sW)))
        A('s_lshl_b32 %s, %s, 7' % (s(sT0), s(sT0))); A('s_add_u32 %s, %s, 0x%x' % (s(sHalo0), s(sT0), KFLAG))
        A('s_lshl_b32 %s, %s, 2' % (s(sT0), s(sR))); A('s_add_u32 %s, %s, %s' % (s(sT0), s(sT0), s(sHalo0)))
        A('v_mov_b32 v100, %s' % s(sCPh))
        A('s_mov_b64 exec, 1')
        vmem('buffer_store_dword v100, off, %s, %s sc0 sc1' % (s(SWS, 4), s(sT0)))
        A('s_mov_b64 exec, -1')
    fill.setdefault(22, []).append(flagK)
    for i in range(16):
        tile, blk = 1 + i // 8, i % 8
        fill.setdefault(1 + i + (i // 4), []).append(lambda tile=tile, blk=blk: emit_dma(dma_w(SWQA, tile, blk)))
    pass2(wq, ring2, fill)
    wait(lg=st['csq'])
    ln_T(vAQ, vCSA, vRstd, vMr)
    phi(vAQ, 96)
    pack(vAQ)
    stamp('pass2_1')
    if STOP == 4:
        A('s_add_u32 %s, %s, 0x%x' % (s(sHalo0), s(sOwn), OBUF))
        A('buffer_store_dwordx4 v[16:19], %s, %s, %s offen' % (v(vL16), s(SWS, 4), s(sHalo0)))
        A('buffer_store_dwordx4 v[20:23], %s, %s, %s offen offset:1024' % (v(vL16), s(SWS, 4), s(sHalo0)))
    ckpt(4)
    A('v_and_b32 v96, 15, %s' % v(vLane)); A('v_lshlrev_b32 v96, 2, v96')
    poll(96, SWS, sCPh, 97, soff=s(sHalo0))
    stamp('kvpoll')
    toks = []
    for j in range(16):
        A('s_add_u32 %s, %s, %d' % (s(sT0), s(sLkv), j * 4096))
        toks.append(vmem('buffer_load_dwordx4 %s, v49, %s, %s offen sc1' % (v(vX + 4 * j, 4), s(SWS, 4), s(sT0))))
    for j in range(1, 16):
        wait(vm=toks[j])
        A('v_pk_add_f32 %s, %s, %s' % (v(vX, 2), v(vX, 2), v(vX + 4 * j, 2)))
        A('v_pk_add_f32 %s, %s, %s' % (v(vX + 2, 2), v(vX + 2, 2), v(vX + 4 * j + 2, 2)))
    lds('ds_write_b128 v48, %s offset:16384' % v(vX, 4))
    A('v_add_u32 v50, %d, %s' % (L_KV + 16384, v(vL16)))
    wait_all(vm=False)
    barrier()
    for p in range(4):
        t = lds('ds_read_b128 %s, v50 offset:%d' % (v(32 + 4 * p, 4), p * 1024))
    wait(lg=t)
    for j in range(8):
        A('v_cndmask_b32 %s, %s, %s, %s' % (v(96 + j), v(40 + j), v(32 + j), s(sHALF, 2)))
    for d in range(4):
        A('v_cvt_pk_bf16_f32 %s, %s, %s' % (v(96 + d), v(96 + 2 * d), v(96 + 2 * d + 1)))
    for j in range(8):
        A('v_cndmask_b32 %s, %s, %s, %s' % (v(112 + j), v(32 + j), v(40 + j), s(sHALF, 2)))
    for d in range(4):
        A('v_cvt_pk_bf16_f32 %s, %s, %s' % (v(100 + d), v(112 + 2 * d), v(112 + 2 * d + 1)))
    mfma(v(32, 16), v(96, 4), v(vAQ, 4), '0')
    mfma(v(48, 16), v(100, 4), v(vAQ + 4, 4), '0')
    A('s_add_u32 %s, %s, 0x%x' % (s(sHalo0), s(sOwn), OBUF))
    A('v_add_f32 v64, 0x%08x, v40' % f2u(1e-6))
    A('v_add_f32 v66, 0x%08x, v48' % f2u(1e-6))
    A('v_rcp_f32 v64, v64'); A('v_rcp_f32 v66, v66')
    for p in range(4):
        A('v_pk_mul_f32 %s, %s, v[64:65] op_sel_hi:[1,0]' % (v(32 + 2 * p, 2), v(32 + 2 * p, 2)))
    for p in range(4):
        A('v_pk_mul_f32 %s, %s, v[66:67] op_sel_hi:[1,0]' % (v(56 + 2 * p, 2), v(56 + 2 * p, 2)))
    for d in range(4):
        A('v_cvt_pk_bf16_f32 %s, %s, %s' % (v(96 + d), v(32 + 2 * d), v(32 + 2 * d + 1)))
    for d in range(4):
        A('v_cvt_pk_bf16_f32 %s, %s, %s' % (v(100 + d), v(56 + 2 * d), v(56 + 2 * d + 1)))
    def sto(sc):
        vmem('buffer_store_dwordx4 v[96:99], %s, %s, %s offen%s' % (v(vL16), s(SWS, 4), s(sHalo0), sc))
        vmem('buffer_store_dwordx4 v[100:103], %s, %s, %s offen offset:1024%s' % (v(vL16), s(SWS, 4), s(sHalo0), sc))
    dual(sto)
    stamp('apply')
    ckpt(5)
    wo_phase(1)

def final():
    A.label('L_final')
    F = vAQ
    A('v_permlane32_swap_b32 %s, %s' % (v(F), v(F + 2))); A('v_permlane32_swap_b32 %s, %s' % (v(F + 1), v(F + 3)))
    A('v_permlane32_swap_b32 %s, %s' % (v(F + 4), v(F + 6))); A('v_permlane32_swap_b32 %s, %s' % (v(F + 5), v(F + 7)))
    A('v_and_b32 v64, 31, %s' % v(vLane)); A('v_lshlrev_b32 v64, 10, v64')
    A('v_lshrrev_b32 v65, 5, %s' % v(vLane)); A('v_lshl_add_u32 v64, v65, 4, v64')
    A('s_lshl_b32 %s, %s, 6' % (s(sT0), s(sC))); A('s_add_u32 %s, %s, %s' % (s(sT0), s(sT0), s(sXb)))
    A('buffer_store_dwordx4 %s, v64, %s, %s offen' % (v(F, 4), s(SOUT, 4), s(sT0)))
    A('buffer_store_dwordx4 %s, v64, %s, %s offen offset:32' % (v(F + 4, 4), s(SOUT, 4), s(sT0)))
    A('s_waitcnt vmcnt(0)')
    stamp('end')
    A.label('L_end')
    A('s_endpgm')

def main():
    prologue()
    A.label('L_loop')
    layerA()
    layerB()
    A('s_add_u32 %s, %s, 1' % (s(sIter), s(sIter)))
    A('s_branch L_loop')
    final()
    hdr = open('interleave_layers__sliding_block__linear_attn_block__prompt.s.ref').read().split('\n')
    head = [l for l in hdr if l.startswith(';') and '@launch' not in l]
    txt = '\n'.join(head) + '\n; @launch grid=(256,1,1) block=(256,1,1) lds=%d\n' % LDS_BYTES
    txt += '.amdgcn_target "amdgcn-amd-amdhsa--gfx950"\n.text\n.globl %s\n.p2align 8\n.type %s,@function\n%s:\n' % (NAME, NAME, NAME)
    txt += A.text()
    txt += '''.section .rodata,"a"
.p2align 6
.amdhsa_kernel %s
  .amdhsa_next_free_vgpr 512
  .amdhsa_next_free_sgpr 102
  .amdhsa_accum_offset 256
  .amdhsa_group_segment_fixed_size 0
  .amdhsa_kernarg_size 72
  .amdhsa_user_sgpr_count 2
  .amdhsa_user_sgpr_kernarg_segment_ptr 1
  .amdhsa_system_sgpr_workgroup_id_x 1
.end_amdhsa_kernel
''' % NAME
    out = [x for x in sys.argv[1:] if not x.startswith('--')][0]
    open(out, 'w').write(txt)
    if STAMPS: open(out + '.stamps', 'w').write('\n'.join(stamp_names))
    print('wrote', out, 'lines', len(A.out), 'nop states', A.nops)
main()
```

```python
import sys, math, struct
from asmlib import *

NAME = 'interleave_layers__sliding_block__linear_attn_block__prompt_kernel'
STAMPS = '--stamps' in sys.argv
def optval(name, default):
    for x in sys.argv:
        if x.startswith('--%s=' % name): return int(x.split('=')[1], 0)
    return default
STOP = optval('stop', 99)
FORCE_SLOW = optval('slow', 0)
AHEAD = optval('ahead', 8)
def f2u(x): return struct.unpack('<I', struct.pack('<f', x))[0]

XBUF, OBUF, XSTAT = 0x000000, 0x200000, 0x400000
GFLAG, HFLAG, KFLAG = 0x440000, 0x448000, 0x450000
LKV = 0x500000
KVBUF = 0x800000
DBGBUF = 0x1000000
WS_BYTES = 0x2000000
OOB = 0x7f000000
R1, R2, R3a, R0, R3b, L_MISC = 0, 32768, 65536, 98304, 131072, 147456
L_KV = R0
L_ROW = L_MISC
L_CS = L_MISC + 1024
L_CSP = L_MISC + 2048
L_RED2 = L_MISC + 8192
LDS_BYTES = 163840
WREG = [{0: R3a, 1: R1, 2: R2}, {0: R0, 1: R1, 2: R2}]
WOREG = [R3a, R0]
AW = [0, 96]; AWO = [192, 224]
SX, SWQA, SWQB, SWOA, SWOB, SOUT, SWS, SDBG = 24, 28, 32, 36, 40, 44, 48, 52
sR, sC, sW, sT, sXb, sOwn, sPh, sFast = 56, 57, 58, 59, 60, 61, 62, 63
sMASK = 64
sHALF = 96
sGF, sSpin = 98, 99
sOb, sSt = 100, 101
sT0, sT1, sXcc, sCPh, sDma, sM0, sT2, sT3, sUP = 4, 5, 6, 7, 8, 9, 10, 11, 12
sLkv = 16
sRb = [0, 1, 14, 15]
QS = f2u(0.25 * math.log2(math.e)); EPS = f2u(1e-5)
sST = 18
sHalo0, sHalo1 = 20, 21
sONE = 22
sG = 3
vLane, vL16, vW0, vW2, vDmaW, vFlagG, vStatSt, vKV = 0, 1, 2, 3, 4, 5, 6, 7
vRES = 8
vAQ, vAK, vAV = 16, 32, 48
vT = 64
vX = 128
vCSA = 112
vRSB = 96
vMRB = 16
vRstd, vMr, vCsV, vCsK = 88, 90, 92, 94
vImg, vImg2 = 86, 87

A = Asm()

class Ctr:
    def __init__(self, cap): self.n = 0; self.done = 0; self.cap = cap
    def issue(self): self.n += 1; return self.n
    def need(self, tok):
        if tok is None or tok <= self.done: return None
        self.done = tok
        return min(self.n - tok, self.cap)
    def reset(self): self.done = self.n
VM, LG = Ctr(63), Ctr(15)
def wait(vm=None, lg=None):
    x = VM.need(vm); y = LG.need(lg)
    parts = []
    if x is not None: parts.append('vmcnt(%d)' % x)
    if y is not None: parts.append('lgkmcnt(%d)' % y)
    if parts: A('s_waitcnt ' + ' '.join(parts))
def wait_all(vm=True, lg=True):
    parts = []
    if vm: parts.append('vmcnt(0)'); VM.reset()
    if lg: parts.append('lgkmcnt(0)'); LG.reset()
    A('s_waitcnt ' + ' '.join(parts))
def vmem(t): A(t); return VM.issue()
def lds(t): A(t); return LG.issue()
def barrier(): A('s_barrier')

_lab = [0]
def newlab(p='L'):
    _lab[0] += 1
    return '%s_%d' % (p, _lab[0])

stamp_names = []
def stamp(name, idx=None):
    if not STAMPS: return
    if idx is None:
        idx = len(stamp_names); stamp_names.append(name)
    A('s_memtime %s' % s(sST, 2))
    A('s_waitcnt lgkmcnt(0)'); LG.reset()
    A('v_mov_b32 v95, %s' % s(sST))
    A('s_mov_b64 exec, 1')
    vmem('buffer_store_dword v95, off, %s, s23 offset:%d' % (s(SWS, 4), 4 * idx))
    A('s_mov_b64 exec, -1')
    return idx

def ckpt(n):
    if STOP == n:
        A('s_waitcnt vmcnt(0) lgkmcnt(0)')
        A('s_branch L_end')

MF = 'v_mfma_f32_32x32x16_bf16'
def mfma(d, x, y, c): A('%s %s, %s, %s, %s' % (MF, d, x, y, c))

def srd(dst, lo, nbytes):
    A('s_mov_b32 %s, %s' % (s(dst), s(lo)))
    A('s_and_b32 %s, %s, 0xffff' % (s(dst + 1), s(lo + 1)))
    A('s_mov_b32 %s, 0x%x' % (s(dst + 2), nbytes))
    A('s_mov_b32 %s, 0x00020000' % s(dst + 3))

def poll(voff, srdr, sval, vdst, soff='0'):
    L = newlab('poll'); D = newlab('polld')
    A('s_mov_b32 %s, 400000' % s(sSpin))
    A.label(L)
    A('buffer_load_dword %s, %s, %s, %s offen sc1' % (v(vdst), v(voff), s(srdr, 4), soff))
    A('s_waitcnt vmcnt(0)')
    A('v_cmp_le_u32 vcc, %s, %s' % (s(sval), v(vdst)))
    A('s_cmp_eq_u64 vcc, exec')
    A('s_cbranch_scc1 %s' % D)
    A('s_sub_u32 %s, %s, 1' % (s(sSpin), s(sSpin)))
    A('s_cmp_lg_u32 %s, 0' % s(sSpin))
    A('s_cbranch_scc1 %s' % L)
    A.label(D)
    VM.reset()

SLOW_ONLY = [False]
def dual(fn):
    if SLOW_ONLY[0]:
        fn(' sc0 sc1'); return
    F = newlab('fast'); E = newlab('dend')
    n0 = VM.n; d0 = VM.done
    A('s_cmp_lg_u32 %s, 0' % s(sFast))
    A('s_cbranch_scc1 %s' % F)
    fn(' sc0 sc1')
    A('s_branch %s' % E)
    A.label(F)
    VM.n = n0; VM.done = d0
    fn('')
    A.label(E)

def gload(ks, base_s):
    if ks % 4 == 0:
        A('s_add_u32 %s, %s, %d' % (s(sG), s(base_s), ks * 1024))
    return vmem('buffer_load_dwordx4 %s, %s, %s, %s offen offset:%d sc1' % (v(vX + 4 * ks, 4), v(vL16), s(SWS, 4), s(sG), (ks % 4) * 1024))

TR2 = [512]
def trfrag(dst, region, ks):
    base, off = (vW0, region) if region < 65536 else (vW2, region - 65536)
    off += ks * 1024
    lds('ds_read_b64_tr_b16 %s, %s offset:%d' % (v(dst, 2), v(base), off))
    return lds('ds_read_b64_tr_b16 %s, %s offset:%d' % (v(dst + 2, 2), v(base), off + TR2[0]))

vI = 80
def img_addr():
    for b in range(4):
        A('s_lshl_b32 %s, %s, 12' % (s(sT3), s(sRb[b]))); A('s_add_u32 %s, %s, %s' % (s(sT3), s(sT3), s(sM0)))
        A('v_add_u32 %s, %s, %s' % (v(vI + b), s(sT3), v(vL16)))
        A('v_add_u32 %s, 0x10000, %s' % (v(vI + 4 + b), v(vI + b)))
def img_loc(region, i):
    base, off = (vI, region) if region < 65536 else (vI + 4, region - 65536)
    return v(base + (i & 3)), off + (i >> 2) * 16384
def img_write(areg, region, i):
    r, off = img_loc(region, i)
    return lds('ds_write_b128 %s, %s offset:%d' % (r, a(areg, 4), off))
def img_read(areg, region, i):
    r, off = img_loc(region, i)
    return lds('ds_read_b128 %s, %s offset:%d' % (a(areg, 4), r, off))

def publish_x(F, sfrag, sstat):
    S, Q = 94, 95
    A('v_mov_b32 %s, 0' % v(S)); A('v_mov_b32 %s, 0' % v(Q))
    def st(sc):
        vmem('buffer_store_dwordx4 %s, %s, %s, %s offen%s' % (v(F, 4), v(vL16), s(SWS, 4), s(sfrag), sc))
        vmem('buffer_store_dwordx4 %s, %s, %s, %s offen offset:1024%s' % (v(F + 4, 4), v(vL16), s(SWS, 4), s(sfrag), sc))
        for d in range(8):
            A('v_dot2c_f32_bf16 %s, %s, %s' % (v(S), s(sONE), v(F + d)))
            A('v_dot2c_f32_bf16 %s, %s, %s' % (v(Q), v(F + d), v(F + d)))
        A('v_mov_b32 v92, %s' % v(S)); A('v_mov_b32 v93, %s' % v(Q))
        A('v_permlane32_swap_b32 v92, %s' % v(S))
        A('v_permlane32_swap_b32 v93, %s' % v(Q))
        A('v_pk_add_f32 %s, %s, v[92:93]' % (v(S, 2), v(S, 2)))
        vmem('buffer_store_dwordx2 %s, %s, %s, %s offen%s' % (v(S, 2), v(vStatSt), s(SWS, 4), s(sstat), sc))
    dual(st)

def flag_g(toff_s, drain=True):
    A('s_or_b32 %s, %s, %s' % (s(sT1), s(sPh), s(sXcc)))
    A('v_mov_b32 v93, %s' % s(sT1))
    A('s_mov_b64 exec, 1')
    def st(sc):
        if drain: A('s_waitcnt vmcnt(0)')
        vmem('buffer_store_dword v93, off, %s, %s%s' % (s(SWS, 4), s(toff_s), sc))
    if drain: VM.reset()
    dual(st)
    A('s_mov_b64 exec, -1')

def wbase(alt):
    A('v_lshrrev_b32 v64, 5, %s' % v(vLane)); A('v_lshlrev_b32 %s, %d, v64' % (v(vW0), 9 if alt else 8))
    A('v_bfe_u32 v65, %s, 2, 2' % v(vLane)); A('v_lshl_add_u32 %s, v65, 6, %s' % (v(vW0), v(vW0)))
    A('v_bfe_u32 v65, %s, 4, 1' % v(vLane)); A('v_lshl_add_u32 %s, v65, 5, %s' % (v(vW0), v(vW0)))
    A('v_and_b32 v65, 3, %s' % v(vLane)); A('v_lshl_add_u32 %s, v65, 3, %s' % (v(vW0), v(vW0)))
    A('v_add_u32 %s, 0x10000, %s' % (v(vW2), v(vW0)))

def prologue():
    A.raw('; generated by gen/gen3.py')
    A('s_cmp_ge_u32 s2, 256')
    A('s_cbranch_scc1 L_end')
    A('s_load_dwordx16 s[4:19], s[0:1], 0')
    A('s_load_dwordx2 s[20:21], s[0:1], 64')
    if STAMPS: A('s_memtime s[100:101]')
    A('v_lshrrev_b32 v1, 6, v0')
    A('v_and_b32 %s, 63, v0' % v(vLane))
    A('v_readfirstlane_b32 %s, v1' % s(sW))
    A('s_and_b32 s3, s2, 7')
    A('s_lshr_b32 %s, s2, 3' % s(sC))
    A('s_lshr_b32 %s, %s, 4' % (s(sR), s(sC)))
    A('s_lshl_b32 s3, s3, 1')
    A('s_add_u32 %s, %s, s3' % (s(sR), s(sR)))
    A('s_and_b32 %s, %s, 15' % (s(sC), s(sC)))
    A('s_lshl_b32 %s, %s, 2' % (s(sT), s(sR)))
    A('s_add_u32 %s, %s, %s' % (s(sT), s(sT), s(sW)))
    A('v_lshlrev_b32 %s, 4, %s' % (v(vL16), v(vLane)))
    A('v_lshrrev_b32 v64, 2, %s' % v(vLane))
    A('v_and_b32 v65, 3, %s' % v(vLane))
    A('v_lshlrev_b32 v65, 4, v65')
    A('s_lshl_b32 s3, %s, 6' % s(sC))
    A('v_add_u32 v65, s3, v65')
    A('v_mul_u32_u24 %s, 3072, v64' % v(vDmaW))
    A('v_add_u32 %s, %s, v65' % (v(vDmaW), v(vDmaW)))
    A('s_lshl_b32 %s, %s, 15' % (s(sXb), s(sT)))
    A('s_lshl_b32 %s, %s, 11' % (s(sOwn), s(sC)))
    A('s_add_u32 %s, %s, %s' % (s(sOwn), s(sOwn), s(sXb)))
    A('v_lshrrev_b32 v64, 5, %s' % v(vLane)); A('v_and_b32 v65, 31, %s' % v(vLane))
    A('v_xor_b32 v66, v64, v65'); A('v_lshlrev_b32 v66, 4, v66'); A('v_lshl_add_u32 v24, v64, 10, v66')
    for i in range(1, 8): A('v_xor_b32 %s, %d, v24' % (v(24 + i), i << 5))
    A('v_and_b32 v66, 15, v65'); A('v_xor_b32 v66, v64, v66'); A('v_lshlrev_b32 v66, 4, v66')
    A('v_lshl_add_u32 v16, v65, 9, v66')
    A('s_lshl_b32 s22, %s, 14' % s(sW)); A('s_add_u32 s22, s22, %d' % R3a)
    A('v_add_u32 v16, s22, v16')
    for i in range(1, 8): A('v_xor_b32 %s, %d, v16' % (v(16 + i), i << 5))
    A('v_lshlrev_b32 v67, 7, %s' % v(vLane))
    A('s_waitcnt lgkmcnt(0)')
    srd(SX, 4, 0x200000); srd(SWQA, 6, 0x180000); srd(SWS, 20, WS_BYTES)
    srd(SWOA, 8, 0x80000); srd(SWQB, 12, 0x180000); srd(SWOB, 14, 0x80000)
    srd(SOUT, 16, 0x200000); srd(SDBG, 18, 256)
    if STAMPS:
        A('s_lshl_b32 s23, s2, 2'); A('s_add_u32 s23, s23, %s' % s(sW))
        A('s_lshl_b32 s23, s23, 9'); A('s_add_u32 s23, s23, 0x%x' % DBGBUF)
        stamp_names.append('start')
        A('v_mov_b32 v95, s100'); A('s_mov_b64 exec, 1')
        A('buffer_store_dword v95, off, %s, s23' % s(SWS, 4)); A('s_mov_b64 exec, -1')
    stamp('kernarg')
    L1, L2, L3, Lj = newlab('t'), newlab('t'), newlab('t'), newlab('tj')
    A('s_cmp_eq_u32 %s, 1' % s(sW)); A('s_cbranch_scc1 %s' % L1)
    A('s_cmp_eq_u32 %s, 2' % s(sW)); A('s_cbranch_scc1 %s' % L2)
    A('s_cmp_eq_u32 %s, 3' % s(sW)); A('s_cbranch_scc1 %s' % L3)
    A('s_mul_i32 %s, s2, 6144' % s(sT0))
    A('s_mov_b32 exec_hi, 0xffff')
    A('buffer_load_dword a255, v67, %s, %s offen' % (s(SWQA, 4), s(sT0)))
    A('s_mov_b64 exec, -1')
    A('s_branch %s' % Lj)
    A.label(L1)
    A('s_lshl_b32 %s, %s, 17' % (s(sT0), s(sR))); A('s_lshl_b32 %s, %s, 13' % (s(sT1), s(sC))); A('s_add_u32 %s, %s, %s' % (s(sT0), s(sT0), s(sT1)))
    A('buffer_load_dword a255, v67, %s, %s offen' % (s(SX, 4), s(sT0)))
    A('s_branch %s' % Lj)
    A.label(L2)
    A('s_mul_i32 %s, s2, 6144' % s(sT0))
    A('s_mov_b32 exec_hi, 0xffff')
    A('buffer_load_dword a255, v67, %s, %s offen' % (s(SWQB, 4), s(sT0)))
    A('s_mov_b64 exec, -1')
    A('s_branch %s' % Lj)
    A.label(L3)
    A('s_lshl_b32 %s, s2, 11' % s(sT0))
    A('s_mov_b64 exec, 0xffff')
    A('buffer_load_dword a255, v67, %s, %s offen' % (s(SWOA, 4), s(sT0)))
    A('buffer_load_dword a255, v67, %s, %s offen' % (s(SWOB, 4), s(sT0)))
    A('s_mov_b64 exec, -1')
    A('s_cmp_lg_u32 s2, 0')
    A('s_cbranch_scc1 %s' % Lj)
    for i in range(4): A('v_mov_b32 %s, 0' % v(68 + i))
    A('v_lshrrev_b32 v65, 2, %s' % v(vLane)); A('v_lshlrev_b32 v65, 7, v65')
    A('v_and_b32 v66, 3, %s' % v(vLane)); A('v_lshl_add_u32 v65, v66, 4, v65')
    for base in (GFLAG, KFLAG):
        for i in range(4):
            A('s_mov_b32 %s, 0x%x' % (s(sT1), base + i * 2048))
            A('buffer_store_dwordx4 v[68:71], v65, %s, %s offen sc0 sc1' % (s(SWS, 4), s(sT1)))
    for i in range(4):
        A('s_mov_b32 %s, 0x%x' % (s(sT1), HFLAG + i * 8192))
        A('buffer_store_dwordx4 v[68:71], v67, %s, %s offen sc0 sc1' % (s(SWS, 4), s(sT1)))
    A.label(Lj)

def xdma(i, half):
    A('s_add_u32 %s, %s, %d' % (s(sT2), s(sXb), i * 2048 + half * 512))
    A('s_add_u32 m0, s22, %d' % (i * 1024))
    return vmem('buffer_load_dwordx4 %s, %s, %s offen lds' % (v(24 + (i & 7)), s(SX, 4), s(sT2)))
def w_soff(tile, half, b):
    A('s_mul_i32 %s, %s, %d' % (s(sT2), s(sRb[b]), 4 * 49152))
    A('s_add_u32 %s, %s, %s' % (s(sT2), s(sT2), s(sDma)))
    A('s_add_u32 %s, %s, %d' % (s(sT2), s(sT2), half * 16 * 49152 + tile * 1024))
def wo_soff(half, b):
    A('s_lshl_b32 %s, %s, 16' % (s(sT2), s(sRb[b])))
    A('s_add_u32 %s, %s, %s' % (s(sT2), s(sT2), s(sHalo1)))
    if half: A('s_add_u32 %s, %s, %d' % (s(sT2), s(sT2), 4 * 65536))
def wdma(tile, half, b):
    w_soff(tile, half, b)
    A('s_lshl_b32 %s, %s, 12' % (s(sT3), s(sRb[b])))
    A('s_add_u32 %s, %s, %s' % (s(sT3), s(sT3), s(sM0)))
    A('s_add_u32 m0, %s, %d' % (s(sT3), WREG[0][tile] + half * 16384))
    return vmem('buffer_load_dwordx4 %s, %s, %s offen lds' % (v(vDmaW), s(SWQA, 4), s(sT2)))

def consts2():
    A('s_mov_b32 %s, 0' % s(sFast))
    A('s_getreg_b32 %s, hwreg(HW_REG_XCC_ID)' % s(sXcc))
    A('s_and_b32 %s, %s, 15' % (s(sXcc), s(sXcc)))
    A('s_mov_b32 %s, 0x100' % s(sPh))
    A('s_add_u32 %s, %s, 0x%x' % (s(sOb), s(sXb), OBUF))
    A('s_lshl_b32 %s, %s, 12' % (s(sSt), s(sT)))
    wbase(True)
    A('s_lshl_b32 %s, %s, 7' % (s(sT0), s(sT))); A('s_add_u32 %s, %s, 0x%x' % (s(sT0), s(sT0), GFLAG))
    A('v_and_b32 v65, 15, %s' % v(vLane)); A('v_lshlrev_b32 v65, 2, v65'); A('v_add_u32 %s, %s, v65' % (v(vFlagG), s(sT0)))
    A('s_lshl_b32 %s, %s, 2' % (s(sGF), s(sC))); A('s_add_u32 %s, %s, %s' % (s(sGF), s(sGF), s(sT0)))
    A('s_lshl_b32 %s, %s, 12' % (s(sT0), s(sW))); A('s_add_u32 %s, %s, %d' % (s(sT0), s(sT0), L_KV))
    A('v_add_u32 %s, %s, %s' % (v(vKV), s(sT0), v(vL16)))
    A('v_and_b32 v65, 31, %s' % v(vLane)); A('v_lshlrev_b32 v64, 2, v64'); A('v_sub_u32 v65, v65, v64')
    for r in range(16):
        A('v_cmp_le_i32 %s, %d, v65' % (s(sMASK + 2 * r, 2), (r & 3) + 8 * (r >> 2)))
    A('s_mov_b32 %s, 0xffff' % s(sHALF)); A('s_mov_b32 %s, 0xffff' % s(sHALF + 1))
    statst()

def sprinkle(ops, side, start=0, end=None):
    end = len(ops) if end is None else end
    k = len(side)
    pos = [start + (i * (end - start)) // max(k, 1) for i in range(k)]
    pi = 0
    for i, x in enumerate(ops):
        while pi < k and pos[pi] <= i:
            side[pi](); pi += 1
        if callable(x): x()
        else: A(x)
    while pi < k:
        side[pi](); pi += 1

def qkv0():
    ONE = '0x3f803f80'
    TR2[0] = 256
    xt1 = [xdma(i, 0) for i in range(4)]
    A('s_mul_i32 %s, %s, 49152' % (s(sDma), s(sW)))
    A('s_lshl_b32 %s, %s, 10' % (s(sM0), s(sW)))
    A('s_and_b32 %s, %s, 1' % (s(sT0), s(sC))); A('s_and_b32 %s, %s, 1' % (s(sT1), s(sR)))
    A('s_lshl_b32 %s, %s, 1' % (s(sT1), s(sT1))); A('s_add_u32 %s, %s, %s' % (s(sT0), s(sT0), s(sT1)))
    for b in range(4):
        A('s_add_u32 %s, %s, %d' % (s(sRb[b]), s(sT0), b)); A('s_and_b32 %s, %s, 3' % (s(sRb[b]), s(sRb[b])))
    consts2()
    xt1 += [xdma(i, 0) for i in range(4, 16)]
    for b in range(4):
        for tile in (1, 2): kv0 = wdma(tile, 0, b)
    def xread(half):
        for ks in range(16):
            t = lds('ds_read_b128 %s, %s offset:%d' % (v(vX + 4 * (16 * half + ks), 4), v(16 + (ks & 7)), (ks >> 3) * 256))
        return t
    wait(vm=xt1[-1])
    stamp('x1')
    Lz = newlab('z')
    A('s_lshl_b32 %s, s2, 2' % s(sT1)); A('s_or_b32 %s, %s, %s' % (s(sT1), s(sT1), s(sW)))
    A('s_cmp_lg_u32 %s, 3' % s(sT1))
    A('s_cbranch_scc1 %s' % Lz)
    A('s_waitcnt vmcnt(0)')
    A('v_mov_b32 v68, 1'); A('s_mov_b64 exec, 1')
    A('buffer_store_dword v68, off, %s, 0 sc0 sc1' % s(SDBG, 4))
    A('s_mov_b64 exec, -1')
    A('s_waitcnt vmcnt(0)')
    A.label(Lz)
    t = xread(0)
    for r in range(11, 16): A('v_mov_b32 %s, 0' % v(r))
    A('s_lshl_b32 %s, %s, 12' % (s(sT0), s(sW)))
    A('v_add_u32 v10, %s, %s' % (s(sT0), v(vW0)))
    A('v_and_b32 v66, 31, %s' % v(vLane)); A('v_lshlrev_b32 v66, 5, v66')
    A('v_lshrrev_b32 v9, 5, %s' % v(vLane)); A('v_lshl_add_u32 v9, v9, 2, v66')
    A('s_lshl_b32 %s, %s, 3' % (s(sT0), s(sW))); A('s_add_u32 %s, %s, 0x%x' % (s(sT0), s(sT0), L_CSP))
    A('v_add_u32 v9, %s, v9' % s(sT0))
    wait(lg=t)
    def dots(half):
        o = []
        for r in range(64):
            x = v(vX + 64 * half + r)
            o.append('v_dot2c_f32_bf16 v14, %s, %s' % (ONE, x)); o.append('v_dot2c_f32_bf16 v15, %s, %s' % (x, x))
        return o
    xt2 = []
    sprinkle(dots(0), [lambda i=i: xt2.append(xdma(i, 1)) for i in range(16)])
    wait(vm=kv0)
    barrier()
    stamp('kv0')
    def cs_half(half):
        tk = {}
        for t_ in range(2):
            for k in range(4):
                d = 96 + (t_ * 4 + k) * 4
                off = WREG[0][1 + t_] + half * 16384 + k * 1024
                lds('ds_read_b64_tr_b16 %s, v10 offset:%d' % (v(d, 2), off))
                tk[(t_, k)] = lds('ds_read_b64_tr_b16 %s, v10 offset:%d' % (v(d + 2, 2), off + 256))
        o = []
        for t_ in range(2):
            for k in range(4):
                o.append(lambda t_=t_, k=k: wait(lg=tk[(t_, k)]))
                for j in range(4): o.append('v_dot2c_f32_bf16 %s, %s, %s' % (v(12 + t_), ONE, v(96 + (t_ * 4 + k) * 4 + j)))
        return o
    st = {}
    later = []
    for b in range(4):
        for tile in (1, 2):
            def f(tile=tile, b=b): st['kv1'] = wdma(tile, 1, b)
            later.append(f)
    qt = {}
    for i in range(8):
        def f(i=i):
            w_soff(0, i >> 2, i & 3)
            qt[i] = vmem('buffer_load_dwordx4 %s, %s, %s, %s offen' % (a(AW[0] + 4 * i, 4), v(vDmaW), s(SWQA, 4), s(sT2)))
        later.append(f)
    def f(): st['dbg'] = vmem('buffer_load_dword v8, off, %s, 0 sc1' % s(SDBG, 4))
    later.append(f)
    ring = lambda ks: vT + 8 * (ks % 3)
    wt = {}
    sprinkle(cs_half(0), later[:3])
    later = later[3:]
    def half_pass(k0, fill):
        for ks in range(k0, k0 + 2):
            trfrag(ring(ks), R1, ks); wt[ks] = trfrag(ring(ks) + 4, R2, ks)
        slot = 0
        for ks in range(k0, k0 + 16):
            if ks + 2 < k0 + 16:
                trfrag(ring(ks + 2), R1, ks + 2); wt[ks + 2] = trfrag(ring(ks + 2) + 4, R2, ks + 2)
            wait(lg=wt[ks])
            X = v(vX + 4 * ks, 4); Wk = v(ring(ks), 4); Wv = v(ring(ks) + 4, 4)
            mfma(v(vAK, 16), Wk, X, '0' if ks == 0 else v(vAK, 16))
            for f in fill.get(slot, []): f()
            slot += 1
            mfma(v(vAV, 16), X, Wv, '0' if ks == 0 else v(vAV, 16))
            for f in fill.get(slot, []): f()
            slot += 1
    half_pass(0, {2 * i + 1: [f] for i, f in enumerate(later)})
    wait(vm=xt2[-1])
    stamp('x2')
    t = xread(1)
    wait(lg=t)
    for x in dots(1): A(x)
    wait(vm=st['kv1'])
    barrier()
    stamp('kv1')
    for x in cs_half(1):
        if callable(x): x()
        else: A(x)
    for t_ in range(2): lds('ds_write_b32 v9, %s offset:%d' % (v(12 + t_), (1 + t_) * 1024))
    A('v_mov_b32 v96, v14'); A('v_mov_b32 v97, v15'); A('v_mov_b32 v98, v14'); A('v_mov_b32 v99, v15')
    A('s_mov_b32 %s, %s' % (s(sONE), ONE))
    F = stats_fns(0, st)
    fill = {}
    def add(slot, fn): fill.setdefault(slot, []).append(fn)
    def qaddr():
        for b in range(4):
            A('s_lshl_b32 %s, %s, 12' % (s(sT3), s(sRb[b]))); A('s_add_u32 %s, %s, %s' % (s(sT3), s(sT3), s(sM0)))
            A('s_add_u32 %s, %s, 0x10000' % (s(sT3), s(sT3)))
            A('v_add_u32 %s, %s, %s' % (v(120 + b), s(sT3), v(vL16)))
    add(0, qaddr)
    for i, n in enumerate(['C', 'D', 'E', 'F']): add(1 + i, F[n])
    add(5, F['cs2a'])
    add(6, F['cs2b'](1)); add(7, F['cs2b'](2))
    add(10, F['cs2c'](1)); add(12, F['cs2c'](2))
    for i in range(4): add(14 + i, F['G'](i))
    add(18, F['H'])
    for i in range(8):
        def f(i=i):
            wait(vm=qt[i])
            lds('ds_write_b128 %s, %s offset:%d' % (v(120 + (i & 3)), a(AW[0] + 4 * i, 4), WREG[0][0] - 65536 + (i >> 2) * 16384))
        add(19 + i, f)
    for i in range(4): add(27 + i, F['I'](i))
    half_pass(16, fill)
    wait(lg=st['bc'])
    stamp('pass1_0')
    ln_T(vAK, vCSA, vRstd, vMr)
    pack(vAK)
    ln_N(vAV, vCsV)
    pack(vAV)
    return st

TOUCH = optval('touch', 1)
PRET = optval('pret', 1)
def touch_w(srdw, sw, nw, vd):
    A('s_lshr_b32 %s, s2, 3' % s(sT3))
    A('v_lshrrev_b32 v64, 4, %s' % v(vLane)); A('v_mul_u32_u24 v64, 3072, v64')
    A('v_and_b32 v65, 15, %s' % v(vLane)); A('v_lshl_add_u32 v64, v65, 7, v64')
    A('v_lshrrev_b32 v65, 3, %s' % v(vLane)); A('v_mul_u32_u24 v65, 3072, v65')
    A('v_and_b32 v66, 7, %s' % v(vLane)); A('v_lshl_add_u32 v65, v66, 7, v65')
    A('s_mul_i32 %s, %s, %d' % (s(sT1), s(sT3), 4 * 3072))
    A('s_mul_i32 %s, %s, %d' % (s(sT2), s(sw), 128 * 3072))
    A('s_add_u32 %s, %s, %s' % (s(sT2), s(sT2), s(sT1)))
    for i in range(4 // nw):
        A('s_add_u32 %s, %s, %d' % (s(sG), s(sT2), 1024 + i * nw * 128 * 3072))
        vmem('buffer_load_dword %s, v64, %s, %s offen' % (vd, s(srdw, 4), s(sG)))
    A('s_lshl_b32 %s, %s, 1' % (s(sT2), s(sT2)))
    vmem('buffer_load_dword %s, v65, %s, %s offen' % (vd, s(srdw, 4), s(sT2)))
def touch_wo(srdw, sw, vd):
    A('s_lshr_b32 %s, s2, 3' % s(sT3))
    A('v_lshlrev_b32 v66, 7, %s' % v(vLane))
    A('s_lshl_b32 %s, %s, 13' % (s(sT1), s(sT3)))
    A('s_lshl_b32 %s, %s, 18' % (s(sT2), s(sw)))
    A('s_add_u32 %s, %s, %s' % (s(sT2), s(sT2), s(sT1)))
    vmem('buffer_load_dword %s, v66, %s, %s offen' % (vd, s(srdw, 4), s(sT2)))

def statst():
    A('s_lshr_b32 %s, %s, 1' % (s(sT0), s(sC))); A('s_and_b32 %s, %s, 3' % (s(sT0), s(sT0))); A('s_lshl_b32 %s, %s, 10' % (s(sT0), s(sT0)))
    A('s_lshr_b32 %s, %s, 3' % (s(sT1), s(sC))); A('s_lshl_b32 %s, %s, 9' % (s(sT1), s(sT1))); A('s_add_u32 %s, %s, %s' % (s(sT0), s(sT0), s(sT1)))
    A('s_and_b32 %s, %s, 1' % (s(sT1), s(sC))); A('s_lshl_b32 %s, %s, 3' % (s(sT1), s(sT1))); A('s_add_u32 %s, %s, %s' % (s(sT0), s(sT0), s(sT1)))
    A('s_add_u32 %s, %s, 0x%x' % (s(sT0), s(sT0), XSTAT))
    A('v_add_u32 %s, %s, %s' % (v(vStatSt), s(sT0), v(vL16)))
    A('s_mov_b32 %s, 0' % s(sUP)); A('s_mov_b32 %s, -1' % s(sUP + 1))
    A('v_mov_b32 v67, 0x%x' % OOB)
    A('v_cndmask_b32 %s, %s, v67, %s' % (v(vStatSt), v(vStatSt), s(sUP, 2)))

def cs_stage1(typ):
    A('s_lshl_b32 %s, %s, 13' % (s(sT0), s(sW)))
    A('v_add_u32 v64, %s, %s' % (s(sT0), v(vW0)))
    A('v_add_u32 v65, %s, %s' % (s(sT0), v(vW2)))
    for t in range(3): A('v_mov_b32 %s, 0' % v(68 + t))
    toks = {}
    order = [(t, k) for t in range(3) for k in range(8)]
    def rd(t, k):
        reg = WREG[typ][t]
        base, off = (64, reg) if reg < 65536 else (65, reg - 65536)
        d = vX + (t * 8 + k) * 4
        lds('ds_read_b64_tr_b16 %s, %s offset:%d' % (v(d, 2), v(base), off + k * 1024))
        toks[(t, k)] = lds('ds_read_b64_tr_b16 %s, %s offset:%d' % (v(d + 2, 2), v(base), off + k * 1024 + 512))
    for i in range(6): rd(*order[i])
    A('v_and_b32 v66, 31, %s' % v(vLane)); A('v_lshlrev_b32 v66, 5, v66')
    A('v_lshrrev_b32 v67, 5, %s' % v(vLane)); A('v_lshl_add_u32 v67, v67, 2, v66')
    A('s_lshl_b32 %s, %s, 3' % (s(sT0), s(sW))); A('s_add_u32 %s, %s, 0x%x' % (s(sT0), s(sT0), L_CSP))
    A('v_add_u32 v67, %s, v67' % s(sT0))
    for i, (t, k) in enumerate(order):
        if i + 6 < 24: rd(*order[i + 6])
        wait(lg=toks[(t, k)])
        d = vX + (t * 8 + k) * 4
        for j in range(4):
            A('v_dot2c_f32_bf16 %s, %s, %s' % (v(68 + t), s(sONE), v(d + j)))
    for t in range(3):
        lds('ds_write_b32 v67, %s offset:%d' % (v(68 + t), t * 1024))

def padd(d, x, y):
    A('v_add_f32 %s, %s, %s' % (v(d), v(x), v(y))); A('v_add_f32 %s, %s, %s' % (v(d + 1), v(x + 1), v(y + 1)))
def ln_T(acc, cs, rs, mr):
    for p in range(8):
        A('v_pk_mul_f32 %s, %s, %s op_sel_hi:[1,0]' % (v(acc + 2 * p, 2), v(acc + 2 * p, 2), v(rs, 2)))
    for p in range(8):
        A('v_pk_fma_f32 %s, %s, %s, %s op_sel_hi:[1,0,1] neg_lo:[0,1,0] neg_hi:[0,1,0]' % (v(acc + 2 * p, 2), v(cs + 2 * p, 2), v(mr, 2), v(acc + 2 * p, 2)))
def ln_N(acc, csn):
    for p in range(8):
        A('v_pk_mul_f32 %s, %s, %s' % (v(acc + 2 * p, 2), v(acc + 2 * p, 2), v(vRSB + 2 * p, 2)))
    for p in range(8):
        A('v_pk_fma_f32 %s, %s, %s, %s op_sel_hi:[1,0,1] neg_lo:[0,1,0] neg_hi:[0,1,0]' % (v(acc + 2 * p, 2), v(vMRB + 2 * p, 2), v(csn, 2), v(acc + 2 * p, 2)))
def pack(acc, dst=None):
    dst = acc if dst is None else dst
    for d in range(8):
        A('v_cvt_pk_bf16_f32 %s, %s, %s' % (v(dst + d), v(acc + 2 * d), v(acc + 2 * d + 1)))
def phi(acc, tmp):
    A('s_mov_b32 %s, 0x%08x' % (s(sT0), f2u(math.log2(math.e))))
    A('s_mov_b32 %s, 0x%08x' % (s(sT1), f2u(math.log2(math.e))))
    A('s_mov_b32 %s, 0x%08x' % (s(sT2), f2u(1e-6)))
    A('s_mov_b32 %s, 0x%08x' % (s(sT3), f2u(1e-6)))
    for p in range(8):
        A('v_pk_mul_f32 %s, %s, %s' % (v(tmp + 2 * p, 2), v(acc + 2 * p, 2), s(sT0, 2)))
    for r in range(16):
        A('v_exp_f32_e64 %s, %s clamp' % (v(tmp + r), v(tmp + r)))
        A('v_max_f32 %s, 0, %s' % (v(acc + r), v(acc + r)))
    for p in range(8):
        A('v_pk_add_f32 %s, %s, %s' % (v(acc + 2 * p, 2), v(acc + 2 * p, 2), v(tmp + 2 * p, 2)))
    for p in range(8):
        A('v_pk_add_f32 %s, %s, %s' % (v(acc + 2 * p, 2), v(acc + 2 * p, 2), s(sT2, 2)))

def stats_fns(typ, st, csb=(16, 24, 112)):
    def statsA():
        wait(vm=st['tok'])
        for j in range(3): padd(96 + 4 * j, 96 + 4 * j, 98 + 4 * j)
    def statsB():
        padd(108, 108, 110); padd(96, 96, 100); padd(104, 104, 108)
    def statsB2():
        padd(96, 96, 104)
        A('v_mov_b32 v98, v96'); A('v_mov_b32 v99, v97')
    def statsC():
        A('v_permlane32_swap_b32 v98, v96'); A('v_permlane32_swap_b32 v99, v97')
        padd(96, 96, 98)
        A('v_mul_f32 v96, 0x%08x, v96' % f2u(1 / 512)); A('v_mul_f32 v97, 0x%08x, v97' % f2u(1 / 512))
    def statsD():
        A('v_fma_f32 v97, -v96, v96, v97')
        A('v_max_f32 v97, 0, v97')
        A('v_add_f32 v97, 0x%08x, v97' % EPS)
        A('v_rsq_f32 %s, v97' % v(vRstd))
    def statsE():
        A('v_mul_f32 %s, v96, %s' % (v(vMr), v(vRstd)))
        A('s_lshl_b32 %s, %s, 8' % (s(sT1), s(sW))); A('s_add_u32 %s, %s, %d' % (s(sT1), s(sT1), L_ROW))
        A('v_lshl_add_u32 v98, %s, 2, %s' % (v(vLane), s(sT1)))
        A('v_cndmask_b32 v99, %s, %s, %s' % (v(vRstd), v(vMr), s(sUP, 2)))
    def statsF():
        st['w'] = lds('ds_write_b32 v98, v99')
        A('v_lshrrev_b32 v89, 5, %s' % v(vLane))
        A('v_lshlrev_b32 v91, 4, v89')
        A('v_add_u32 v89, %s, v91' % s(sT1))
        A('v_add_u32 v91, 0x%x, v91' % (L_CS + typ * 384))
    def statsG(i):
        def f():
            lds('ds_read_b128 %s, v89 offset:%d' % (v(vRSB + 4 * i, 4), i * 32))
            st['bc'] = lds('ds_read_b128 %s, v89 offset:%d' % (v(vMRB + 4 * i, 4), 128 + i * 32))
        return f
    def statsH():
        A('v_and_b32 v93, 31, %s' % v(vLane)); A('v_lshlrev_b32 v93, 2, v93')
        A('v_add_u32 v93, 0x%x, v93' % (L_CS + typ * 384))
        st['bc'] = lds('ds_read_b32 %s, v93 offset:256' % v(vCsV))
        if typ == 1: st['bc'] = lds('ds_read_b32 %s, v93 offset:128' % v(vCsK))
    def statsI(i):
        def f():
            st['bc'] = lds('ds_read_b128 %s, v91 offset:%d' % (v(vCSA + 4 * i, 4), 128 + i * 32))
        return f
    def cs2a():
        barrier()
        A('v_and_b32 v92, 31, %s' % v(vLane)); A('v_lshlrev_b32 v93, 5, v92')
        A('v_add_u32 v93, 0x%x, v93' % L_CSP)
        A('v_lshlrev_b32 v92, 2, v92'); A('v_add_u32 v92, 0x%x, v92' % (L_CS + typ * 384))
    def cs2b(t):
        def f():
            lds('ds_read_b128 %s, v93 offset:%d' % (v(csb[t], 4), t * 1024))
            st['cs%d' % t] = lds('ds_read_b128 %s, v93 offset:%d' % (v(csb[t] + 4, 4), t * 1024 + 16))
        return f
    def cs2c(t):
        def f():
            b = csb[t]
            wait(lg=st['cs%d' % t])
            padd(b, b, b + 2); padd(b + 4, b + 4, b + 6); padd(b, b, b + 4)
            A('v_add_f32 %s, %s, %s' % (v(b), v(b), v(b + 1)))
            lds('ds_write_b32 v92, %s offset:%d' % (v(b), t * 128))
        return f
    return dict(A=statsA, B=statsB, B2=statsB2, C=statsC, D=statsD, E=statsE, F=statsF, G=statsG, H=statsH, I=statsI, cs2a=cs2a, cs2b=cs2b, cs2c=cs2c)

def qkv(L):
    typ = L & 1
    wait_all(vm=False)
    barrier()
    if L < 2: cs_stage1(typ)
    stamp('pre%d' % L)
    ring = lambda ks: vT + 8 * (ks % 3)
    wt = {}
    for ks in range(2):
        trfrag(ring(ks), R1, ks); wt[ks] = trfrag(ring(ks) + 4, R2, ks)
    poll(vFlagG, SWS, sPh, 96)
    st = {}
    xt = {}
    def ld_stats():
        A('s_add_u32 %s, %s, 0x%x' % (s(sT1), s(sSt), XSTAT))
        for j in range(4):
            st['tok'] = vmem('buffer_load_dwordx4 %s, %s, %s, %s offen offset:%d sc1' % (v(96 + 4 * j, 4), v(vL16), s(SWS, 4), s(sT1), j * 1024))
    for ks in range(4): xt[ks] = gload(ks, sXb)
    A('s_add_u32 %s, %s, 0x100' % (s(sPh), s(sPh)))
    stamp('xpoll%d' % L)
    for ks in range(4, AHEAD): xt[ks] = gload(ks, sXb)
    fill = {}
    def add(slot, fn): fill.setdefault(slot, []).append(fn)
    F = stats_fns(typ, st)
    if L < 2:
        for i, f in enumerate([F['cs2a']] + [F['cs2b'](t) for t in range(3)]): add(4 + 2 * i, f)
        for t in range(3): add(14 + 2 * t, F['cs2c'](t))
    add(1, ld_stats)
    seq = [F[n] for n in ['A', 'B', 'B2', 'C', 'D', 'E', 'F']] + [F['G'](i) for i in range(4)] + [F['H']]
    if typ == 0: seq += [F['I'](i) for i in range(4)]
    for i, f in enumerate(seq): add(26 + 2 * i, f)
    slot = 0
    for ks in range(32):
        if ks + 2 < 32:
            trfrag(ring(ks + 2), R1, ks + 2); wt[ks + 2] = trfrag(ring(ks + 2) + 4, R2, ks + 2)
        wait(vm=xt[ks], lg=wt[ks])
        X = v(vX + 4 * ks, 4); Wk = v(ring(ks), 4); Wv = v(ring(ks) + 4, 4)
        cK = '0' if ks == 0 else v(vAK, 16); cV = '0' if ks == 0 else v(vAV, 16)
        if typ == 0: mfma(v(vAK, 16), Wk, X, cK)
        else: mfma(v(vAK, 16), X, Wk, cK)
        for f in fill.get(slot, []): f()
        slot += 1
        mfma(v(vAV, 16), X, Wv, cV)
        if ks + AHEAD < 32: xt[ks + AHEAD] = gload(ks + AHEAD, sXb)
        for f in fill.get(slot, []): f()
        slot += 1
    ring2 = lambda ks: vT + 4 * (ks % 4)
    wq = {}
    for ks in range(3): wq[ks] = trfrag(ring2(ks), WREG[typ][0], ks)
    wait(lg=st['bc'])
    stamp('pass1_%d' % L)
    if typ == 0:
        ln_T(vAK, vCSA, vRstd, vMr)
        pack(vAK)
    else:
        ln_N(vAK, vCsK)
    ln_N(vAV, vCsV)
    pack(vAV)
    return wq, ring2, st

def pass2(typ, wq, ring2, fill):
    for ks in range(32):
        if ks + 3 < 32: wq[ks + 3] = trfrag(ring2(ks + 3), WREG[typ][0], ks + 3)
        wait(lg=wq[ks])
        mfma(v(vAQ, 16), v(ring2(ks), 4), v(vX + 4 * ks, 4), '0' if ks == 0 else v(vAQ, 16))
        for f in fill.get(ks, []): f()

def common_fill(fill, st, at=2, res=True):
    for i in range(4):
        def f(i=i):
            st['csq'] = lds('ds_read_b128 %s, v91 offset:%d' % (v(vCSA + 4 * i, 4), i * 32))
        fill.setdefault(at + i, []).append(f)
    def ld_res():
        for j in range(2):
            st['res'] = vmem('buffer_load_dwordx4 %s, %s, %s, %s offen offset:%d sc1' % (v(vRES + 4 * j, 4), v(vL16), s(SWS, 4), s(sOwn), j * 1024))
    if res: fill.setdefault(0, []).append(ld_res)

def dbg_q():
    A('s_add_u32 %s, %s, 0x%x' % (s(sHalo0), s(sOwn), OBUF))
    A('buffer_store_dwordx4 v[16:19], %s, %s, %s offen' % (v(vL16), s(SWS, 4), s(sHalo0)))
    A('buffer_store_dwordx4 v[20:23], %s, %s, %s offen offset:1024' % (v(vL16), s(SWS, 4), s(sHalo0)))

def layerA(L):
    if L == 0:
        st = qkv0()
        Lok = newlab('zok')
        wait(vm=st['dbg'])
        A('v_readfirstlane_b32 %s, v8' % s(sT0))
        A('s_cmp_lg_u32 %s, 0' % s(sT0))
        A('s_cbranch_scc1 %s' % Lok)
        A('v_mov_b32 v96, 0'); A('s_mov_b32 %s, 1' % s(sT1))
        poll(96, SDBG, sT1, 97)
        A.label(Lok)
    else:
        wq, ring2, st = qkv(L)
    A('s_lshl_b32 %s, %s, 4' % (s(sT0), s(sT))); A('s_add_u32 %s, %s, %s' % (s(sT0), s(sT0), s(sC)))
    A('s_lshl_b32 %s, %s, 12' % (s(sT0), s(sT0))); A('s_add_u32 %s, %s, 0x%x' % (s(sT0), s(sT0), KVBUF))
    srcs = [vAK, vAK + 4, vAV, vAV + 4]
    for j in range(4):
        kvtok = vmem('buffer_store_dwordx4 %s, %s, %s, %s offen offset:%d sc0 sc1' % (v(srcs[j], 4), v(vL16), s(SWS, 4), s(sT0), j * 1024))
    for j in range(4):
        lds('ds_write_b128 %s, %s offset:%d' % (v(vKV), v(srcs[j], 4), 32768 + j * 1024))
    A('s_mov_b32 %s, %d' % (s(sCPh), L + 1))
    fill = {}
    if L == 0:
        SLOW_ONLY[0] = True
        flag_g(sGF, drain=False)
        SLOW_ONLY[0] = False
        A('s_lshl_b32 %s, %s, 13' % (s(sT0), s(sW)))
        A('v_add_u32 v10, %s, %s' % (s(sT0), v(vW2)))
        wait_all(vm=False)
        barrier()
        tk = []
        for k in range(8):
            lds('ds_read_b64_tr_b16 %s, v10 offset:%d' % (v(96 + 4 * k, 2), WREG[0][0] - 65536 + k * 1024))
            tk.append(lds('ds_read_b64_tr_b16 %s, v10 offset:%d' % (v(98 + 4 * k, 2), WREG[0][0] - 65536 + k * 1024 + 256)))
        ring2 = lambda ks: vT + 4 * (ks % 4)
        wq = {}
        for k in range(8):
            wait(lg=tk[k])
            for j in range(4): A('v_dot2c_f32_bf16 v11, %s, %s' % (s(sONE), v(96 + 4 * k + j)))
        lds('ds_write_b32 v9, v11')
        for ks in range(3): wq[ks] = trfrag(ring2(ks), WREG[0][0], ks)
        F = stats_fns(0, st, csb=(100, 0, 0))
        fill[3] = [F['cs2a']]; fill[4] = [F['cs2b'](0)]; fill[7] = [F['cs2c'](0)]
        common_fill(fill, st, at=9, res=False)
    else:
        common_fill(fill, st)
    def flagH():
        A('s_lshl_b32 %s, %s, 4' % (s(sT0), s(sC))); A('s_add_u32 %s, %s, %s' % (s(sT0), s(sT0), s(sR)))
        A('s_lshl_b32 %s, %s, 5' % (s(sT0), s(sT0))); A('s_add_u32 %s, %s, %s' % (s(sT0), s(sT0), s(sW)))
        A('s_lshl_b32 %s, %s, 2' % (s(sT0), s(sT0))); A('s_add_u32 %s, %s, 0x%x' % (s(sT0), s(sT0), HFLAG))
        A('v_mov_b32 v96, %s' % s(sCPh))
        wait(vm=kvtok)
        A('s_mov_b64 exec, 1')
        vmem('buffer_store_dword v96, off, %s, %s sc0 sc1' % (s(SWS, 4), s(sT0)))
        A('s_mov_b64 exec, -1')
    fill.setdefault(12 if L == 0 else 20, []).append(flagH)
    def qs():
        A('v_mul_f32 %s, 0x%08x, %s' % (v(vRstd), QS, v(vRstd)))
        A('v_mul_f32 %s, 0x%08x, %s' % (v(vMr), QS, v(vMr)))
        if L == 0: img_addr()
    fill.setdefault(1, []).append(qs)
    if L == 0:
        for i in range(8, 24):
            tile, blk = divmod(i, 8)
            fill.setdefault(6 + i, []).append(lambda tile=tile, blk=blk, i=i: img_read(AW[0] + 4 * i, WREG[0][tile], blk))
    pass2(0, wq, ring2, fill)
    wait(lg=st['csq'])
    ln_T(vAQ, vCSA, vRstd, vMr)
    pack(vAQ)
    if L == 0:
        TR2[0] = 512
        wbase(False)
    stamp('pass2_%d' % L)
    if STOP == 1 and L == 0: dbg_q(); ckpt(1)
    A('s_lshr_b32 %s, %s, 1' % (s(sT0), s(sW)))
    A('s_add_u32 %s, %s, %s' % (s(sT0), s(sT0), s(sR)))
    Lno = newlab('nohalo')
    A('s_mov_b32 %s, 0x%x' % (s(sHalo0), OOB))
    A('s_cmp_lt_u32 %s, 2' % s(sT0))
    A('s_cbranch_scc1 %s' % Lno)
    A('s_sub_u32 %s, %s, 2' % (s(sT0), s(sT0)))
    A('s_lshl_b32 %s, %s, 4' % (s(sT1), s(sC))); A('s_add_u32 %s, %s, %s' % (s(sT1), s(sT1), s(sT0)))
    A('s_lshl_b32 %s, %s, 7' % (s(sT1), s(sT1))); A('s_add_u32 %s, %s, 0x%x' % (s(sT1), s(sT1), HFLAG))
    A('s_and_b32 %s, %s, 1' % (s(sT2), s(sW))); A('s_lshl_b32 %s, %s, 3' % (s(sT3), s(sT2))); A('s_add_u32 %s, %s, %s' % (s(sT1), s(sT1), s(sT3)))
    A('v_and_b32 v96, 1, %s' % v(vLane)); A('v_lshlrev_b32 v96, 2, v96')
    A('s_lshl_b32 %s, %s, 2' % (s(sT0), s(sT0))); A('s_lshl_b32 %s, %s, 1' % (s(sT2), s(sT2))); A('s_add_u32 %s, %s, %s' % (s(sT0), s(sT0), s(sT2)))
    A('s_lshl_b32 %s, %s, 4' % (s(sT0), s(sT0))); A('s_add_u32 %s, %s, %s' % (s(sT0), s(sT0), s(sC)))
    A('s_lshl_b32 %s, %s, 12' % (s(sT0), s(sT0))); A('s_add_u32 %s, %s, 0x%x' % (s(sHalo0), s(sT0), KVBUF))
    poll(96, SWS, sCPh, 97, soff=s(sT1))
    A.label(Lno)
    VM.reset()
    A('s_add_u32 %s, %s, 65536' % (s(sHalo1), s(sHalo0)))
    A('s_lshl_b32 %s, %s, 13' % (s(sT0), s(sW)))
    for i in range(2):
        A('s_add_u32 m0, %s, %d' % (s(sT0), L_KV + i * 4096))
        for j in range(4):
            vmem('buffer_load_dwordx4 %s, %s, %s offen offset:%d sc1 lds' % (v(vL16), s(SWS, 4), s(sHalo0 + i), j * 1024))
    halotok = VM.n
    stamp('halopoll%d' % L)
    PM = 24; VR = 32; OA = 48; KF = 64; PF = 100
    M = 108
    A('v_mov_b32 v108, 0xffff'); A('v_mov_b32 v109, 0xffff0000')
    for d in range(8):
        A('v_cndmask_b32 %s, 0, v108, %s' % (v(PM + d), s(sMASK + 4 * d, 2)))
        A('v_cndmask_b32 v110, 0, v109, %s' % s(sMASK + 4 * d + 2, 2))
        A('v_or_b32 %s, %s, v110' % (v(PM + d), v(PM + d)))
    for i in range(16): A('v_mov_b32 %s, %s' % (v(VR + i), s(sONE)))
    A('s_add_u32 %s, %s, 0x%x' % (s(sHalo0), s(sOwn), OBUF))
    A('s_lshl_b32 %s, %s, 14' % (s(sHalo1), s(sW)))
    if L == 0:
        poll(vFlagG, SWS, sPh, 96)
        A('v_and_b32 v96, 0xff, v96')
        A('v_cmp_eq_u32 vcc, %s, v96' % s(sXcc))
        A('s_cmp_eq_u64 vcc, exec')
        A('s_cselect_b32 %s, %d, 0' % (s(sFast), 0 if FORCE_SLOW else 1))
        A('s_add_u32 %s, %s, 0x100' % (s(sPh), s(sPh)))
    wait(vm=halotok); wait_all(vm=False)
    barrier()
    stamp('halo%d' % L)
    if L == 0:
        A('v_and_b32 v64, 15, %s' % v(vLane)); A('v_lshlrev_b32 v64, 7, v64')
        A('v_add_u32 v64, %s, v64' % s(sOwn))
        A('v_add_u32 v65, 0x%x, v64' % OBUF)
        A('v_cndmask_b32 v64, v64, v65, %s' % s(sHALF, 2))
        A('s_lshl_b32 %s, %s, 8' % (s(sT0), s(sC))); A('s_add_u32 %s, %s, %s' % (s(sT0), s(sT0), s(sSt)))
        A('s_add_u32 %s, %s, 0x%x' % (s(sT0), s(sT0), XSTAT))
        A('v_and_b32 v65, 1, %s' % v(vLane)); A('v_lshl_add_u32 v65, v65, 7, %s' % s(sT0))
        A('v_cndmask_b32 v64, v64, v65, %s' % s(sUP, 2))
        A('s_mov_b32 exec_hi, 3')
        vmem('buffer_load_dword a255, v64, %s, 0 offen sc1' % s(SWS, 4))
        A('s_mov_b64 exec, -1')
        A('v_and_b32 v64, 31, %s' % v(vLane)); A('v_lshlrev_b32 v64, 10, v64')
        A('v_lshrrev_b32 v65, 5, %s' % v(vLane)); A('v_lshl_add_u32 v64, v65, 4, v64')
        A('s_lshl_b32 %s, %s, 6' % (s(sT0), s(sC))); A('s_add_u32 %s, %s, %s' % (s(sT0), s(sT0), s(sXb)))
        vmem('buffer_load_dwordx4 %s, v64, %s, %s offen' % (v(vRES, 4), s(SX, 4), s(sT0)))
        vmem('buffer_load_dwordx4 %s, v64, %s, %s offen offset:32' % (v(vRES + 4, 4), s(SX, 4), s(sT0)))
    T = lambda j: 112 + 16 * j
    jobs = []
    wo_tok = {}
    def wo_off():
        A('v_lshrrev_b32 v111, 2, %s' % v(vLane)); A('v_lshlrev_b32 v111, 11, v111'); A('v_sub_u32 v111, %s, v111' % v(vDmaW))
    if L == 0:
        for tile, i in [(t, b) for b in range(8) for t in (1, 2)] + [(0, b) for b in range(8)]:
            def f(tile=tile, i=i):
                w_soff(tile, i >> 2, i & 3)
                vmem('buffer_load_dwordx4 %s, %s, %s, %s offen' % (a(AW[1] + 4 * (tile * 8 + i), 4), v(vDmaW), s(SWQB, 4), s(sT2)))
            jobs.append(f)
        for ty, sr in ((0, SWOA), (1, SWOB)):
            for i in range(8):
                def f(i=i, ty=ty, sr=sr):
                    wo_soff(i >> 2, i & 3)
                    vmem('buffer_load_dwordx4 %s, v111, %s, %s offen' % (a(AWO[ty] + 4 * i, 4), s(sr, 4), s(sT2)))
                jobs.append(f)
    def job():
        if jobs: jobs.pop(0)()
    kt = {}
    def kload(u, j):
        kt[(u, j)] = lds('ds_read_b128 %s, %s offset:%d' % (v(KF + 4 * j, 4), v(vKV), j * 4096 + u * 1024))
    def smf(u, j):
        wait(lg=kt[(u, j)])
        mfma(v(T(j), 16), v(KF + 4 * j, 4), v(vAQ + 4 * u, 4), '0')
    vt = {}
    def vload(u, j, slot):
        A('s_mov_b64 exec, %s' % s(sHALF, 2))
        lds('ds_read_b128 %s, %s offset:%d' % (v(VR + 8 * slot, 4), v(vKV), j * 4096 + 2048 + u * 256))
        vt[(u, j)] = lds('ds_read_b128 %s, %s offset:%d' % (v(VR + 8 * slot + 4, 4), v(vKV), j * 4096 + 3072 + u * 256))
        A('s_mov_b64 exec, -1')
    def override(tiles, Lv):
        A('s_mov_b32 %s, 0xff800000' % s(sT0)); A('s_mov_b32 %s, 0xff800000' % s(sT1))
        for j in tiles:
            A('s_cmp_ge_u32 %s, %d' % (s(sT), 8 - j))
            A('s_cbranch_scc1 %s' % Lv)
            for p in range(8):
                A('v_pk_mov_b32 %s, %s, %s' % (v(T(j) + 2 * p, 2), s(sT0, 2), s(sT0, 2)))
    def merge():
        return ['v_cndmask_b32 %s, %s, %s, %s' % (v(T(8) + r), v(T(0) + r), v(T(8) + r), s(sMASK + 2 * r, 2)) for r in range(16)]
    def maxops(j, first=False):
        o = []
        for p in range(8):
            ch = p & 1
            if first and p < 2: o.append('v_max_f32 %s, %s, %s' % (v(M + ch), v(T(j) + 2 * p), v(T(j) + 2 * p + 1)))
            else: o.append('v_max3_f32 %s, %s, %s, %s' % (v(M + ch), v(M + ch), v(T(j) + 2 * p), v(T(j) + 2 * p + 1)))
        return o
    def maxfin():
        A('v_max_f32 v108, v108, v109')
        A('v_mov_b32 v109, v108')
        A('v_permlane32_swap_b32 v109, v108')
        A('v_max_f32 v108, v108, v109')
    def ofin(u):
        A('v_rcp_f32 v104, %s' % v(OA + 8))
        for p in range(4):
            A('v_pk_mul_f32 %s, %s, v[104:105] op_sel_hi:[1,0]' % (v(OA + 2 * p, 2), v(OA + 2 * p, 2)))
        for d in range(4):
            A('v_cvt_pk_bf16_f32 %s, %s, %s' % (v(100 + d), v(OA + 2 * d), v(OA + 2 * d + 1)))
        def sto(sc):
            vmem('buffer_store_dwordx4 v[100:103], %s, %s, %s offen offset:%d%s' % (v(vL16), s(SWS, 4), s(sHalo0), u * 1024, sc))
        dual(sto)
    order = [0, 8, 1, 2, 3, 4, 5, 6, 7]
    for j in order: kload(0, j)
    vload(0, 8, 0); vload(0, 0, 1)
    wo_off()
    Lslow = newlab('sslow'); Lj = newlab('sjoin')
    A('s_cmp_lt_u32 %s, 8' % s(sT))
    A('s_cbranch_scc1 %s' % Lslow)
    d0 = LG.done
    for j in (0, 8, 1, 2): smf(0, j)
    mg = merge()
    for x in mg[:8]: A(x)
    smf(0, 3)
    for x in mg[8:]: A(x)
    smf(0, 4)
    for x in maxops(8, True): A(x)
    for j in range(1, 8):
        if j + 4 <= 7: smf(0, j + 4)
        for x in maxops(j): A(x)
    A('s_branch %s' % Lj)
    A.label(Lslow)
    LG.done = d0
    for j in order: smf(0, j)
    Lv = newlab('valid')
    override(range(8), Lv)
    A.label(Lv)
    for x in merge(): A(x)
    for x in maxops(8, True): A(x)
    for j in range(1, 8):
        for x in maxops(j): A(x)
    A.label(Lj)
    for u in range(2):
        maxfin()
        seq = [8, 1, 2, 3, 4, 5, 6, 7]
        pend = []
        if u == 0:
            for j in order: pend.append(lambda j=j: kload(1, j))
        first = [True]
        def pv(slot, half, breg):
            def f():
                mfma(v(OA, 16), v(VR + 8 * slot + 4 * half, 4), v(breg, 4), '0' if first[0] else v(OA, 16)); first[0] = False
            f.mf = True
            return f
        def smf1(j):
            def f(): smf(1, j)
            f.mf = True
            return f
        if u == 0: pend = pend[:7] + [smf1(0)] + pend[7:]
        for n, j in enumerate(seq):
            b = T(j)
            ops = []
            for p in range(8):
                ops.append('v_pk_add_f32 %s, %s, v[108:109] op_sel_hi:[1,0] neg_lo:[0,1] neg_hi:[0,1]' % (v(b + 2 * p, 2), v(b + 2 * p, 2)))
            for r in range(16): ops.append('v_exp_f32 %s, %s' % (v(b + r), v(b + r)))
            for d in range(8): ops.append('v_cvt_pk_bf16_f32 %s, %s, %s' % (v(b + d), v(b + 2 * d), v(b + 2 * d + 1)))
            if j == 8:
                for d in range(8):
                    ops.append('v_bfi_b32 %s, %s, 0, %s' % (v(PF + d), v(PM + d), v(b + d)))
                    ops.append('v_and_b32 %s, %s, %s' % (v(b + d), v(PM + d), v(b + d)))
            nm = sum(1 for p_ in pend if getattr(p_, 'mf', False))
            step = 4 if nm > 3 else 5
            posl = []; cur = 0; mi = 0
            for p_ in pend:
                if getattr(p_, 'mf', False):
                    cur = 8 + step * mi; mi += 1
                    posl.append(cur)
                else:
                    cur += 1
                    posl.append(cur)
            pi = 0
            for i, x in enumerate(ops):
                while pi < len(pend) and posl[pi] <= i:
                    pend[pi](); pi += 1
                A(x)
            assert pi == len(pend), (posl, len(ops))
            pend = []
            if j == 8:
                pend.append(lambda u=u: wait(lg=max(vt[(u, 0)], vt[(u, 8)])))
                pend += [pv(0, 0, b), pv(0, 1, b + 4), lambda u=u: vload(u, 1, 0), pv(1, 0, PF), pv(1, 1, PF + 4), lambda u=u: vload(u, 2, 1)]
                if u == 0: pend.append(smf1(8))
                pend.append(job)
            else:
                slot = (j - 1) % 2
                def w_pv(u=u, j=j, slot=slot, b=b):
                    wait(lg=vt[(u, j)]); pv(slot, 0, b)()
                w_pv.mf = True
                pend += [w_pv, job, pv(slot, 1, b + 4)]
                if j + 2 <= 7: pend.append(lambda u=u, j=j, slot=slot: vload(u, j + 2, slot))
                elif u == 0: pend.append(lambda j=j, slot=slot: vload(1, 8 if slot == 0 else 0, slot))
                if u == 0: pend.append(smf1(j))
                pend.append(job)
                if j in (2, 4, 6) or u == 0: pend.append(job)
        if u == 0:
            Lv = newlab('valid')
            override(range(7), Lv)
            A.label(Lv)
            ops = merge() + maxops(8, True)
            for j in range(1, 7): ops += maxops(j)
            k = len(pend); pos = [1 + 8 * i for i in range(k)]
            pi = 0
            for i, x in enumerate(ops):
                while pi < k and pos[pi] == i:
                    pend[pi](); pi += 1
                A(x)
            assert pi == k
            ofin(0)
            Lv = newlab('valid')
            override([7], Lv)
            A.label(Lv)
            for x in maxops(7): A(x)
        else:
            for f in pend: f()
            while jobs: job()
            ofin(1)
    stamp('attn%d' % L)
    if L == 0: ckpt(2)
    wo_phase(L)

def wo_phase(L):
    typ = L & 1
    def unpack():
        for d in range(8):
            A('v_lshlrev_b32 %s, 16, %s' % (v(vAQ + 2 * d), v(vRES + d)))
            A('v_and_b32 %s, 0xffff0000, %s' % (v(vAQ + 2 * d + 1), v(vRES + d)))
    img_addr()
    if L > 0:
        for i in range(4): img_write(AWO[typ] + 4 * i, WOREG[typ], i)
    flag_g(sGF)
    for i in range(4 if L > 0 else 0, 8): img_write(AWO[typ] + 4 * i, WOREG[typ], i)
    if L == 0:
        F = vRES
        A('v_permlane32_swap_b32 %s, %s' % (v(F), v(F + 2))); A('v_permlane32_swap_b32 %s, %s' % (v(F + 1), v(F + 3)))
        A('v_permlane32_swap_b32 %s, %s' % (v(F + 4), v(F + 6))); A('v_permlane32_swap_b32 %s, %s' % (v(F + 5), v(F + 7)))
    unpack()
    wait_all(vm=False)
    barrier()
    ring = lambda ks: vT + 4 * (ks % 4)
    wt = {}
    for ks in range(3): wt[ks] = trfrag(ring(ks), WOREG[typ], ks)
    poll(vFlagG, SWS, sPh, 96)
    xt = {}
    for ks in range(4): xt[ks] = gload(ks, sOb)
    A('s_add_u32 %s, %s, 0x100' % (s(sPh), s(sPh)))
    stamp('opoll%d' % L)
    for ks in range(4, AHEAD): xt[ks] = gload(ks, sOb)
    nt = 1 - typ
    for ks in range(32):
        if ks + 3 < 32: wt[ks + 3] = trfrag(ring(ks + 3), WOREG[typ], ks + 3)
        if L < 3 and ks < 24:
            ii = (ks + 8) % 24
            tile, blk = divmod(ii, 8)
            img_write(AW[nt] + 4 * ii, WREG[nt][tile], blk)
        wait(vm=xt[ks], lg=wt[ks])
        mfma(v(vAQ, 16), v(ring(ks), 4), v(vX + 4 * ks, 4), v(vAQ, 16))
        if ks + AHEAD < 32: xt[ks + AHEAD] = gload(ks + AHEAD, sOb)
    pack(vAQ)
    stamp('wo%d' % L)
    if L == 3: return
    publish_x(vAQ, sOwn, sSt)
    flag_g(sGF)
    stamp('xpub%d' % L)
    if L < 2: ckpt(3 + 3 * L)

def layerB(L):
    wq, ring2, st = qkv(L)
    phi(vAK, 96)
    pack(vAK)
    for i in range(4): A('v_mov_b32 %s, %s' % (v(40 + i), s(sONE)))
    D1, D2 = 96, 112
    mfma(v(D1, 16), v(vAK, 4), v(vAV, 4), '0')
    mfma(v(D2, 16), v(vAK, 4), v(40, 4), '0')
    mfma(v(D1, 16), v(vAK + 4, 4), v(vAV + 4, 4), v(D1, 16))
    mfma(v(D2, 16), v(vAK + 4, 4), v(40, 4), v(D2, 16))
    A('s_add_u32 %s, %s, %d' % (s(sT0), s(sM0), R3b))
    A('v_add_u32 v56, %s, %s' % (s(sT0), v(vL16)))
    A('v_lshrrev_b32 v57, 4, %s' % v(vLane)); A('v_lshlrev_b32 v57, 5, v57')
    A('s_lshl_b32 %s, %s, 4' % (s(sT1), s(sW))); A('s_add_u32 %s, %s, %d' % (s(sT1), s(sT1), 2048 - 32))
    A('v_add_u32 v57, %s, v57' % s(sT1))
    A('v_add_u32 v58, %s, %s' % (s(sM0), v(vL16)))
    A('s_cmp_lt_u32 %s, 2' % s(sW))
    A('s_cselect_b64 vcc, -1, 0')
    A('v_cndmask_b32 v57, v57, v58, vcc')
    for j in range(8):
        A('v_cndmask_b32 %s, %s, %s, %s' % (v(32 + j), v(D1 + 8 + j), v(D1 + j), s(sHALF, 2)))
    for p in range(2):
        lds('ds_write_b128 %s, %s offset:%d' % (v(vKV), v(32 + 4 * p, 4), 32768 + p * 1024))
    for j in range(8):
        A('v_cndmask_b32 %s, %s, %s, %s' % (v(40 + j), v(D2 + j), v(D2 + 8 + j), s(sHALF, 2)))
    for p in range(2, 4):
        lds('ds_write_b128 %s, %s offset:%d' % (v(vKV), v(32 + 4 * p, 4), 32768 + p * 1024))
    A('s_lshl_b32 %s, %s, 16' % (s(sLkv), s(sC)))
    A('s_add_u32 %s, %s, 0x%x' % (s(sLkv), s(sLkv), LKV + (L >> 1) * 0x100000))
    A('s_lshl_b32 %s, %s, 12' % (s(sT0), s(sR))); A('s_add_u32 %s, %s, %s' % (s(sT0), s(sT0), s(sLkv)))
    wait_all(vm=False)
    barrier()
    for j in range(4):
        t = lds('ds_read_b128 %s, v56 offset:%d' % (v(96 + 4 * j, 4), j * 4096))
    wait(lg=t)
    A('v_pk_add_f32 v[96:97], v[96:97], v[100:101]'); A('v_pk_add_f32 v[98:99], v[98:99], v[102:103]')
    A('v_pk_add_f32 v[104:105], v[104:105], v[108:109]'); A('v_pk_add_f32 v[106:107], v[106:107], v[110:111]')
    A('v_pk_add_f32 v[96:97], v[96:97], v[104:105]'); A('v_pk_add_f32 v[98:99], v[98:99], v[106:107]')
    kvtok = vmem('buffer_store_dwordx4 v[96:99], v57, %s, %s offen sc0 sc1' % (s(SWS, 4), s(sT0)))
    A('s_mov_b32 %s, %d' % (s(sCPh), L + 1))
    stamp('kvpub%d' % L)
    fill = {}
    common_fill(fill, st)
    def flagK():
        A('s_lshl_b32 %s, %s, 2' % (s(sT0), s(sC))); A('s_add_u32 %s, %s, %s' % (s(sT0), s(sT0), s(sW)))
        A('s_lshl_b32 %s, %s, 7' % (s(sT0), s(sT0))); A('s_add_u32 %s, %s, 0x%x' % (s(sHalo0), s(sT0), KFLAG))
        A('s_lshl_b32 %s, %s, 2' % (s(sT0), s(sR))); A('s_add_u32 %s, %s, %s' % (s(sT0), s(sT0), s(sHalo0)))
        A('v_mov_b32 v100, %s' % s(sCPh))
        wait(vm=kvtok)
        A('s_mov_b64 exec, 1')
        vmem('buffer_store_dword v100, off, %s, %s sc0 sc1' % (s(SWS, 4), s(sT0)))
        A('s_mov_b64 exec, -1')
    fill.setdefault(20, []).append(flagK)
    pass2(1, wq, ring2, fill)
    wait(lg=st['csq'])
    ln_T(vAQ, vCSA, vRstd, vMr)
    phi(vAQ, 96)
    pack(vAQ)
    stamp('pass2_%d' % L)
    if STOP == 4 and L == 1: dbg_q(); ckpt(4)
    A('v_and_b32 v96, 15, %s' % v(vLane)); A('v_lshlrev_b32 v96, 2, v96')
    A('s_add_u32 %s, %s, %d' % (s(sT0), s(sM0), L_RED2))
    A('v_add_u32 v56, %s, %s' % (s(sT0), v(vL16)))
    A('v_add_u32 v58, %d, %s' % (L_RED2, v(vL16)))
    poll(96, SWS, sCPh, 97, soff=s(sHalo0))
    toks = []
    for j in range(16):
        A('s_add_u32 %s, %s, %d' % (s(sT0), s(sLkv), j * 4096))
        toks.append(vmem('buffer_load_dwordx4 %s, v57, %s, %s offen sc1' % (v(vX + 4 * j, 4), s(SWS, 4), s(sT0))))
    stamp('kvpoll%d' % L)
    for j in range(1, 16):
        wait(vm=toks[j])
        A('v_pk_add_f32 %s, %s, %s' % (v(vX, 2), v(vX, 2), v(vX + 4 * j, 2)))
        A('v_pk_add_f32 %s, %s, %s' % (v(vX + 2, 2), v(vX + 2, 2), v(vX + 4 * j + 2, 2)))
    lds('ds_write_b128 v56, %s' % v(vX, 4))
    wait_all(vm=False)
    barrier()
    for p in range(4):
        t = lds('ds_read_b128 %s, v58 offset:%d' % (v(32 + 4 * p, 4), p * 1024))
    wait(lg=t)
    for j in range(8):
        A('v_cndmask_b32 %s, %s, %s, %s' % (v(96 + j), v(40 + j), v(32 + j), s(sHALF, 2)))
    for d in range(4):
        A('v_cvt_pk_bf16_f32 %s, %s, %s' % (v(96 + d), v(96 + 2 * d), v(96 + 2 * d + 1)))
    for j in range(8):
        A('v_cndmask_b32 %s, %s, %s, %s' % (v(112 + j), v(32 + j), v(40 + j), s(sHALF, 2)))
    for d in range(4):
        A('v_cvt_pk_bf16_f32 %s, %s, %s' % (v(100 + d), v(112 + 2 * d), v(112 + 2 * d + 1)))
    mfma(v(32, 16), v(96, 4), v(vAQ, 4), '0')
    mfma(v(48, 16), v(100, 4), v(vAQ + 4, 4), '0')
    A('s_add_u32 %s, %s, 0x%x' % (s(sHalo0), s(sOwn), OBUF))
    A('v_add_f32 v64, 0x%08x, v40' % f2u(1e-6))
    A('v_add_f32 v66, 0x%08x, v48' % f2u(1e-6))
    A('v_rcp_f32 v64, v64'); A('v_rcp_f32 v66, v66')
    for p in range(4):
        A('v_pk_mul_f32 %s, %s, v[64:65] op_sel_hi:[1,0]' % (v(32 + 2 * p, 2), v(32 + 2 * p, 2)))
    for p in range(4):
        A('v_pk_mul_f32 %s, %s, v[66:67] op_sel_hi:[1,0]' % (v(56 + 2 * p, 2), v(56 + 2 * p, 2)))
    for d in range(4):
        A('v_cvt_pk_bf16_f32 %s, %s, %s' % (v(96 + d), v(32 + 2 * d), v(32 + 2 * d + 1)))
    for d in range(4):
        A('v_cvt_pk_bf16_f32 %s, %s, %s' % (v(100 + d), v(56 + 2 * d), v(56 + 2 * d + 1)))
    def sto(sc):
        vmem('buffer_store_dwordx4 v[96:99], %s, %s, %s offen%s' % (v(vL16), s(SWS, 4), s(sHalo0), sc))
        vmem('buffer_store_dwordx4 v[100:103], %s, %s, %s offen offset:1024%s' % (v(vL16), s(SWS, 4), s(sHalo0), sc))
    dual(sto)
    stamp('apply%d' % L)
    if L == 1: ckpt(5)
    wo_phase(L)

def final():
    F = vAQ
    A('v_and_b32 v64, 31, %s' % v(vLane)); A('v_lshlrev_b32 v64, 10, v64')
    A('v_lshrrev_b32 v65, 5, %s' % v(vLane)); A('v_lshl_add_u32 v64, v65, 4, v64')
    A('s_lshl_b32 %s, %s, 6' % (s(sT0), s(sC))); A('s_add_u32 %s, %s, %s' % (s(sT0), s(sT0), s(sXb)))
    A('v_permlane32_swap_b32 %s, %s' % (v(F), v(F + 2))); A('v_permlane32_swap_b32 %s, %s' % (v(F + 1), v(F + 3)))
    A('v_permlane32_swap_b32 %s, %s' % (v(F + 4), v(F + 6))); A('v_permlane32_swap_b32 %s, %s' % (v(F + 5), v(F + 7)))
    A('buffer_store_dwordx4 %s, v64, %s, %s offen' % (v(F, 4), s(SOUT, 4), s(sT0)))
    A('buffer_store_dwordx4 %s, v64, %s, %s offen offset:32' % (v(F + 4, 4), s(SOUT, 4), s(sT0)))
    if STAMPS:
        A('s_waitcnt vmcnt(0)')
        stamp('end')
    A.label('L_end')
    A('s_endpgm')

def main():
    prologue()
    layerA(0); layerB(1); layerA(2); layerB(3)
    final()
    hdr = open('interleave_layers__sliding_block__linear_attn_block__prompt.s.ref').read().split('\n')
    head = [l for l in hdr if l.startswith(';') and '@launch' not in l]
    txt = '\n'.join(head) + '\n; @launch grid=(256,1,1) block=(256,1,1) lds=%d\n' % LDS_BYTES
    txt += '.amdgcn_target "amdgcn-amd-amdhsa--gfx950"\n.text\n.globl %s\n.p2align 8\n.type %s,@function\n%s:\n' % (NAME, NAME, NAME)
    txt += A.text()
    txt += '''.section .rodata,"a"
.p2align 6
.amdhsa_kernel %s
  .amdhsa_next_free_vgpr 512
  .amdhsa_next_free_sgpr 102
  .amdhsa_accum_offset 256
  .amdhsa_group_segment_fixed_size 0
  .amdhsa_kernarg_size 72
  .amdhsa_user_sgpr_count 2
  .amdhsa_user_sgpr_kernarg_segment_ptr 1
  .amdhsa_system_sgpr_workgroup_id_x 1
.end_amdhsa_kernel
''' % NAME
    out = [x for x in sys.argv[1:] if not x.startswith('--')][0]
    open(out, 'w').write(txt)
    if STAMPS: open(out + '.stamps', 'w').write('\n'.join(stamp_names))
    print('wrote', out, 'lines', len(A.out), 'nop states', A.nops)
main()
```

```python
import sys, math, struct
from asmlib import *

NAME = 'interleave_layers__sliding_block__linear_attn_block__prompt_kernel'
STAMPS = '--stamps' in sys.argv
def optval(name, default):
    for x in sys.argv:
        if x.startswith('--%s=' % name): return int(x.split('=')[1], 0)
    return default
STOP = optval('stop', 99)
FORCE_SLOW = optval('slow', 0)
AHEAD = optval('ahead', 8)
def f2u(x): return struct.unpack('<I', struct.pack('<f', x))[0]

XBUF, OBUF, XSTAT = 0x000000, 0x200000, 0x400000
GFLAG, HFLAG, KFLAG = 0x440000, 0x448000, 0x450000
LKV = 0x500000
KVBUF = 0x800000
DBGBUF = 0x1000000
WS_BYTES = 0x2000000
OOB = 0x7f000000
R1, R2, R3a, R0, R3b, L_MISC = 0, 32768, 65536, 98304, 131072, 147456
L_KV = R0
L_ROW = L_MISC
L_CS = L_MISC + 1024
L_CSP = L_MISC + 2048
L_RED2 = L_MISC + 8192
LDS_BYTES = 163840
WREG = [{0: R3a, 1: R1, 2: R2}, {0: R0, 1: R1, 2: R2}]
WOREG = [R3a, R0]
AW = [0, 96]; AWO = [192, 224]
SX, SWQA, SWQB, SWOA, SWOB, SOUT, SWS, SDBG = 24, 28, 32, 36, 40, 44, 48, 52
sR, sC, sW, sT, sXb, sOwn, sPh, sFast = 56, 57, 58, 59, 60, 61, 62, 63
sMASK = 64
sHALF = 96
sGF, sSpin = 98, 99
sOb, sSt = 100, 101
sT0, sT1, sXcc, sCPh, sDma, sM0, sT2, sT3, sUP = 4, 5, 6, 7, 8, 9, 10, 11, 12
sLkv = 16
sRb = [0, 1, 14, 15]
QS = f2u(0.25 * math.log2(math.e)); EPS = f2u(1e-5)
sST = 18
sHalo0, sHalo1 = 20, 21
sONE = 22
sG = 3
vLane, vL16, vW0, vW2, vDmaW, vFlagG, vStatSt, vKV = 0, 1, 2, 3, 4, 5, 6, 7
vRES = 8
vAQ, vAK, vAV = 16, 32, 48
vT = 64
vX = 128
vCSA = 112
vRSB = 96
vMRB = 16
vRstd, vMr, vCsV, vCsK = 88, 90, 92, 94
vImg, vImg2 = 86, 87

A = Asm()
OOL = []
CODEPF = optval('codepf', 1)
FORCE_FB = optval('fb', 0)

class Ctr:
    def __init__(self, cap): self.n = 0; self.done = 0; self.cap = cap
    def issue(self): self.n += 1; return self.n
    def need(self, tok):
        if tok is None or tok <= self.done: return None
        self.done = tok
        return min(self.n - tok, self.cap)
    def reset(self): self.done = self.n
VM, LG = Ctr(63), Ctr(15)
def wait(vm=None, lg=None):
    x = VM.need(vm); y = LG.need(lg)
    parts = []
    if x is not None: parts.append('vmcnt(%d)' % x)
    if y is not None: parts.append('lgkmcnt(%d)' % y)
    if parts: A('s_waitcnt ' + ' '.join(parts))
def wait_all(vm=True, lg=True):
    parts = []
    if vm: parts.append('vmcnt(0)'); VM.reset()
    if lg: parts.append('lgkmcnt(0)'); LG.reset()
    A('s_waitcnt ' + ' '.join(parts))
def vmem(t): A(t); return VM.issue()
def lds(t): A(t); return LG.issue()
def barrier(): A('s_barrier')

_lab = [0]
def newlab(p='L'):
    _lab[0] += 1
    return '%s_%d' % (p, _lab[0])

stamp_names = []
def stamp(name, idx=None):
    if not STAMPS: return
    if idx is None:
        idx = len(stamp_names); stamp_names.append(name)
    A('s_memtime %s' % s(sST, 2))
    A('s_waitcnt lgkmcnt(0)'); LG.reset()
    A('v_mov_b32 v95, %s' % s(sST))
    A('v_mov_b32 v93, s23')
    lds('ds_write_b32 v93, v95 offset:%d' % (4 * idx))
    return idx

def ckpt(n):
    if STOP == n:
        A('s_waitcnt vmcnt(0) lgkmcnt(0)')
        A('s_branch L_end')

MF = 'v_mfma_f32_32x32x16_bf16'
def mfma(d, x, y, c): A('%s %s, %s, %s, %s' % (MF, d, x, y, c))

def srd(dst, lo, nbytes):
    A('s_mov_b32 %s, %s' % (s(dst), s(lo)))
    A('s_and_b32 %s, %s, 0xffff' % (s(dst + 1), s(lo + 1)))
    A('s_mov_b32 %s, 0x%x' % (s(dst + 2), nbytes))
    A('s_mov_b32 %s, 0x00020000' % s(dst + 3))

def poll(voff, srdr, sval, vdst, soff='0'):
    L = newlab('poll'); D = newlab('polld')
    A('s_mov_b32 %s, 400000' % s(sSpin))
    A.label(L)
    A('buffer_load_dword %s, %s, %s, %s offen sc1' % (v(vdst), v(voff), s(srdr, 4), soff))
    A('s_waitcnt vmcnt(0)')
    A('v_cmp_le_u32 vcc, %s, %s' % (s(sval), v(vdst)))
    A('s_cmp_eq_u64 vcc, exec')
    A('s_cbranch_scc1 %s' % D)
    A('s_sub_u32 %s, %s, 1' % (s(sSpin), s(sSpin)))
    A('s_cmp_lg_u32 %s, 0' % s(sSpin))
    A('s_cbranch_scc1 %s' % L)
    A.label(D)
    VM.reset()

SLOW_ONLY = [False]
def dual(fn):
    if SLOW_ONLY[0]:
        fn(' sc0 sc1'); return
    F = newlab('fast'); E = newlab('dend')
    n0 = VM.n; d0 = VM.done
    A('s_cmp_lg_u32 %s, 0' % s(sFast))
    A('s_cbranch_scc1 %s' % F)
    fn(' sc0 sc1')
    A('s_branch %s' % E)
    A.label(F)
    VM.n = n0; VM.done = d0
    fn('')
    A.label(E)

def gload(ks, base_s):
    if ks % 4 == 0:
        A('s_add_u32 %s, %s, %d' % (s(sG), s(base_s), ks * 1024))
    return vmem('buffer_load_dwordx4 %s, %s, %s, %s offen offset:%d sc1' % (v(vX + 4 * ks, 4), v(vL16), s(SWS, 4), s(sG), (ks % 4) * 1024))

TR2 = [512]
def trfrag(dst, region, ks):
    base, off = (vW0, region) if region < 65536 else (vW2, region - 65536)
    off += ks * 1024
    lds('ds_read_b64_tr_b16 %s, %s offset:%d' % (v(dst, 2), v(base), off))
    return lds('ds_read_b64_tr_b16 %s, %s offset:%d' % (v(dst + 2, 2), v(base), off + TR2[0]))

vI = 80
def img_addr():
    for b in range(4):
        A('s_lshl_b32 %s, %s, 12' % (s(sT3), s(sRb[b]))); A('s_add_u32 %s, %s, %s' % (s(sT3), s(sT3), s(sM0)))
        A('v_add_u32 %s, %s, %s' % (v(vI + b), s(sT3), v(vL16)))
        A('v_add_u32 %s, 0x10000, %s' % (v(vI + 4 + b), v(vI + b)))
def img_loc(region, i):
    base, off = (vI, region) if region < 65536 else (vI + 4, region - 65536)
    return v(base + (i & 3)), off + (i >> 2) * 16384
def img_write(areg, region, i):
    r, off = img_loc(region, i)
    return lds('ds_write_b128 %s, %s offset:%d' % (r, a(areg, 4), off))
def img_read(areg, region, i):
    r, off = img_loc(region, i)
    return lds('ds_read_b128 %s, %s offset:%d' % (a(areg, 4), r, off))

def publish_x(F, sfrag, sstat):
    S, Q = 94, 95
    A('v_mov_b32 %s, 0' % v(S)); A('v_mov_b32 %s, 0' % v(Q))
    def st(sc):
        vmem('buffer_store_dwordx4 %s, %s, %s, %s offen%s' % (v(F, 4), v(vL16), s(SWS, 4), s(sfrag), sc))
        vmem('buffer_store_dwordx4 %s, %s, %s, %s offen offset:1024%s' % (v(F + 4, 4), v(vL16), s(SWS, 4), s(sfrag), sc))
        for d in range(8):
            A('v_dot2c_f32_bf16 %s, %s, %s' % (v(S), s(sONE), v(F + d)))
            A('v_dot2c_f32_bf16 %s, %s, %s' % (v(Q), v(F + d), v(F + d)))
        A('v_mov_b32 v92, %s' % v(S)); A('v_mov_b32 v93, %s' % v(Q))
        A('v_permlane32_swap_b32 v92, %s' % v(S))
        A('v_permlane32_swap_b32 v93, %s' % v(Q))
        A('v_pk_add_f32 %s, %s, v[92:93]' % (v(S, 2), v(S, 2)))
        vmem('buffer_store_dwordx2 %s, %s, %s, %s offen%s' % (v(S, 2), v(vStatSt), s(SWS, 4), s(sstat), sc))
    dual(st)

def flag_g(toff_s, drain=True):
    A('s_or_b32 %s, %s, %s' % (s(sT1), s(sPh), s(sXcc)))
    A('v_mov_b32 v93, %s' % s(sT1))
    A('s_mov_b64 exec, 1')
    def st(sc):
        if drain: A('s_waitcnt vmcnt(0)')
        vmem('buffer_store_dword v93, off, %s, %s%s' % (s(SWS, 4), s(toff_s), sc))
    if drain: VM.reset()
    dual(st)
    A('s_mov_b64 exec, -1')

def wbase(alt):
    A('v_lshrrev_b32 v64, 5, %s' % v(vLane)); A('v_lshlrev_b32 %s, %d, v64' % (v(vW0), 9 if alt else 8))
    A('v_bfe_u32 v65, %s, 2, 2' % v(vLane)); A('v_lshl_add_u32 %s, v65, 6, %s' % (v(vW0), v(vW0)))
    A('v_bfe_u32 v65, %s, 4, 1' % v(vLane)); A('v_lshl_add_u32 %s, v65, 5, %s' % (v(vW0), v(vW0)))
    A('v_and_b32 v65, 3, %s' % v(vLane)); A('v_lshl_add_u32 %s, v65, 3, %s' % (v(vW0), v(vW0)))
    A('v_add_u32 %s, 0x10000, %s' % (v(vW2), v(vW0)))

def prologue():
    A.raw('; generated by gen/gen3.py')
    A('s_cmp_ge_u32 s2, 256')
    A('s_cbranch_scc1 L_end')
    A('s_load_dwordx16 s[4:19], s[0:1], 0')
    A('s_load_dwordx2 s[20:21], s[0:1], 64')
    if STAMPS: A('s_memtime s[100:101]'); A('s_memrealtime s[98:99]')
    A('v_lshrrev_b32 v1, 6, v0')
    A('v_and_b32 %s, 63, v0' % v(vLane))
    A('v_readfirstlane_b32 %s, v1' % s(sW))
    A('s_and_b32 s3, s2, 7')
    A('s_lshr_b32 %s, s2, 3' % s(sC))
    A('s_lshr_b32 %s, %s, 4' % (s(sR), s(sC)))
    A('s_lshl_b32 s3, s3, 1')
    A('s_add_u32 %s, %s, s3' % (s(sR), s(sR)))
    A('s_and_b32 %s, %s, 15' % (s(sC), s(sC)))
    A('s_lshl_b32 %s, %s, 2' % (s(sT), s(sR)))
    A('s_add_u32 %s, %s, %s' % (s(sT), s(sT), s(sW)))
    A('v_lshlrev_b32 %s, 4, %s' % (v(vL16), v(vLane)))
    A('v_lshrrev_b32 v64, 2, %s' % v(vLane))
    A('v_and_b32 v65, 3, %s' % v(vLane))
    A('v_lshlrev_b32 v65, 4, v65')
    A('s_lshl_b32 s3, %s, 6' % s(sC))
    A('v_add_u32 v65, s3, v65')
    A('v_mul_u32_u24 %s, 3072, v64' % v(vDmaW))
    A('v_add_u32 %s, %s, v65' % (v(vDmaW), v(vDmaW)))
    A('s_lshl_b32 %s, %s, 15' % (s(sXb), s(sT)))
    A('s_lshl_b32 %s, %s, 11' % (s(sOwn), s(sC)))
    A('s_add_u32 %s, %s, %s' % (s(sOwn), s(sOwn), s(sXb)))
    A('v_lshrrev_b32 v64, 5, %s' % v(vLane)); A('v_and_b32 v65, 31, %s' % v(vLane))
    A('v_xor_b32 v66, v64, v65'); A('v_lshlrev_b32 v66, 4, v66'); A('v_lshl_add_u32 v24, v64, 10, v66')
    for i in range(1, 8): A('v_xor_b32 %s, %d, v24' % (v(24 + i), i << 5))
    A('v_and_b32 v66, 15, v65'); A('v_xor_b32 v66, v64, v66'); A('v_lshlrev_b32 v66, 4, v66')
    A('v_lshl_add_u32 v16, v65, 9, v66')
    A('s_lshl_b32 s22, %s, 14' % s(sW)); A('s_add_u32 s22, s22, %d' % R3a)
    A('v_add_u32 v16, s22, v16')
    for i in range(1, 8): A('v_xor_b32 %s, %d, v16' % (v(16 + i), i << 5))
    A('v_lshlrev_b32 v67, 7, %s' % v(vLane))
    A('s_waitcnt lgkmcnt(0)')
    srd(SX, 4, 0x200000); srd(SWQA, 6, 0x180000); srd(SWS, 20, WS_BYTES)
    srd(SWOA, 8, 0x80000); srd(SWQB, 12, 0x180000); srd(SWOB, 14, 0x80000)
    srd(SOUT, 16, 0x200000); srd(SDBG, 18, 256)
    if STAMPS:
        A('s_lshl_b32 s23, %s, 9' % s(sW)); A('s_add_u32 s23, s23, %d' % (L_MISC + 12288))
        stamp_names.append('start')
        A('v_mov_b32 v95, s100'); A('v_mov_b32 v93, s23')
        A('ds_write_b32 v93, v95')
        A('v_mov_b32 v95, s98')
        A('ds_write_b32 v93, v95 offset:248')
    stamp('kernarg')
    L1, L2, L3, Lj = newlab('t'), newlab('t'), newlab('t'), newlab('tj')
    A('s_cmp_eq_u32 %s, 1' % s(sW)); A('s_cbranch_scc1 %s' % L1)
    A('s_cmp_eq_u32 %s, 2' % s(sW)); A('s_cbranch_scc1 %s' % L2)
    A('s_cmp_eq_u32 %s, 3' % s(sW)); A('s_cbranch_scc1 %s' % L3)
    A('s_mul_i32 %s, s2, 6144' % s(sT0))
    A('s_mov_b32 exec_hi, 0xffff')
    A('buffer_load_dword a255, v67, %s, %s offen' % (s(SWQA, 4), s(sT0)))
    A('s_mov_b64 exec, -1')
    A('s_branch %s' % Lj)
    A.label(L1)
    A('s_lshl_b32 %s, %s, 17' % (s(sT0), s(sR))); A('s_lshl_b32 %s, %s, 13' % (s(sT1), s(sC))); A('s_add_u32 %s, %s, %s' % (s(sT0), s(sT0), s(sT1)))
    A('buffer_load_dword a255, v67, %s, %s offen' % (s(SX, 4), s(sT0)))
    A('s_branch %s' % Lj)
    A.label(L2)
    A('s_mul_i32 %s, s2, 6144' % s(sT0))
    A('s_mov_b32 exec_hi, 0xffff')
    A('buffer_load_dword a255, v67, %s, %s offen' % (s(SWQB, 4), s(sT0)))
    A('s_mov_b64 exec, -1')
    A('s_branch %s' % Lj)
    A.label(L3)
    A('s_lshl_b32 %s, s2, 11' % s(sT0))
    A('s_mov_b64 exec, 0xffff')
    A('buffer_load_dword a255, v67, %s, %s offen' % (s(SWOA, 4), s(sT0)))
    A('buffer_load_dword a255, v67, %s, %s offen' % (s(SWOB, 4), s(sT0)))
    A('s_mov_b64 exec, -1')
    if CODEPF:
        A('s_getpc_b64 s[10:11]')
        A.raw('L_pc:')
        A('s_lshr_b32 %s, s2, 3' % s(sT0))
        A('v_lshlrev_b32 v64, 5, %s' % v(vLane)); A('v_add_u32 v64, %s, v64' % s(sT0)); A('v_lshlrev_b32 v64, 7, v64')
        A.raw('    v_cmp_gt_u32 vcc, L_codeend-L_pc-4, v64')
        A('s_nop 4')
        A('s_and_b64 exec, exec, vcc')
        A('global_load_dword a255, v64, s[10:11]')
        A('s_mov_b64 exec, -1')
    A('s_cmp_lg_u32 s2, 0')
    A('s_cbranch_scc1 %s' % Lj)
    for i in range(4): A('v_mov_b32 %s, 0' % v(68 + i))
    A('v_lshrrev_b32 v65, 2, %s' % v(vLane)); A('v_lshlrev_b32 v65, 7, v65')
    A('v_and_b32 v66, 3, %s' % v(vLane)); A('v_lshl_add_u32 v65, v66, 4, v65')
    for base in (GFLAG, KFLAG):
        for i in range(4):
            A('s_mov_b32 %s, 0x%x' % (s(sT1), base + i * 2048))
            A('buffer_store_dwordx4 v[68:71], v65, %s, %s offen sc0 sc1' % (s(SWS, 4), s(sT1)))
    for i in range(4):
        A('s_mov_b32 %s, 0x%x' % (s(sT1), HFLAG + i * 8192))
        A('buffer_store_dwordx4 v[68:71], v67, %s, %s offen sc0 sc1' % (s(SWS, 4), s(sT1)))
    A.label(Lj)

def xdma(i, half):
    A('s_add_u32 %s, %s, %d' % (s(sT2), s(sXb), i * 2048 + half * 512))
    A('s_add_u32 m0, s22, %d' % (i * 1024))
    return vmem('buffer_load_dwordx4 %s, %s, %s offen lds' % (v(24 + (i & 7)), s(SX, 4), s(sT2)))
def w_soff(tile, half, b):
    A('s_mul_i32 %s, %s, %d' % (s(sT2), s(sRb[b]), 4 * 49152))
    A('s_add_u32 %s, %s, %s' % (s(sT2), s(sT2), s(sDma)))
    A('s_add_u32 %s, %s, %d' % (s(sT2), s(sT2), half * 16 * 49152 + tile * 1024))
def wo_soff(half, b):
    A('s_lshl_b32 %s, %s, 16' % (s(sT2), s(sRb[b])))
    A('s_add_u32 %s, %s, %s' % (s(sT2), s(sT2), s(sHalo1)))
    if half: A('s_add_u32 %s, %s, %d' % (s(sT2), s(sT2), 4 * 65536))
def wdma(tile, half, b):
    w_soff(tile, half, b)
    A('s_lshl_b32 %s, %s, 12' % (s(sT3), s(sRb[b])))
    A('s_add_u32 %s, %s, %s' % (s(sT3), s(sT3), s(sM0)))
    A('s_add_u32 m0, %s, %d' % (s(sT3), WREG[0][tile] + half * 16384))
    return vmem('buffer_load_dwordx4 %s, %s, %s offen lds' % (v(vDmaW), s(SWQA, 4), s(sT2)))

def consts2():
    A('s_mov_b32 %s, 0' % s(sFast))
    A('s_getreg_b32 %s, hwreg(HW_REG_XCC_ID)' % s(sXcc))
    A('s_and_b32 %s, %s, 15' % (s(sXcc), s(sXcc)))
    A('s_mov_b32 %s, 0x100' % s(sPh))
    A('s_add_u32 %s, %s, 0x%x' % (s(sOb), s(sXb), OBUF))
    A('s_lshl_b32 %s, %s, 12' % (s(sSt), s(sT)))
    wbase(True)
    A('s_lshl_b32 %s, %s, 7' % (s(sT0), s(sT))); A('s_add_u32 %s, %s, 0x%x' % (s(sT0), s(sT0), GFLAG))
    A('v_and_b32 v65, 15, %s' % v(vLane)); A('v_lshlrev_b32 v65, 2, v65'); A('v_add_u32 %s, %s, v65' % (v(vFlagG), s(sT0)))
    A('s_lshl_b32 %s, %s, 2' % (s(sGF), s(sC))); A('s_add_u32 %s, %s, %s' % (s(sGF), s(sGF), s(sT0)))
    A('s_lshl_b32 %s, %s, 12' % (s(sT0), s(sW))); A('s_add_u32 %s, %s, %d' % (s(sT0), s(sT0), L_KV))
    A('v_add_u32 %s, %s, %s' % (v(vKV), s(sT0), v(vL16)))
    A('v_and_b32 v65, 31, %s' % v(vLane)); A('v_lshlrev_b32 v64, 2, v64'); A('v_sub_u32 v65, v65, v64')
    for r in range(16):
        A('v_cmp_le_i32 %s, %d, v65' % (s(sMASK + 2 * r, 2), (r & 3) + 8 * (r >> 2)))
    A('s_mov_b32 %s, 0xffff' % s(sHALF)); A('s_mov_b32 %s, 0xffff' % s(sHALF + 1))
    statst()

def sprinkle(ops, side, start=0, end=None):
    end = len(ops) if end is None else end
    k = len(side)
    pos = [start + (i * (end - start)) // max(k, 1) for i in range(k)]
    pi = 0
    for i, x in enumerate(ops):
        while pi < k and pos[pi] <= i:
            side[pi](); pi += 1
        if callable(x): x()
        else: A(x)
    while pi < k:
        side[pi](); pi += 1

def qkv0():
    ONE = '0x3f803f80'
    TR2[0] = 256
    xt1 = [xdma(i, 0) for i in range(4)]
    A('s_mul_i32 %s, %s, 49152' % (s(sDma), s(sW)))
    A('s_lshl_b32 %s, %s, 10' % (s(sM0), s(sW)))
    A('s_and_b32 %s, %s, 1' % (s(sT0), s(sC))); A('s_and_b32 %s, %s, 1' % (s(sT1), s(sR)))
    A('s_lshl_b32 %s, %s, 1' % (s(sT1), s(sT1))); A('s_add_u32 %s, %s, %s' % (s(sT0), s(sT0), s(sT1)))
    for b in range(4):
        A('s_add_u32 %s, %s, %d' % (s(sRb[b]), s(sT0), b)); A('s_and_b32 %s, %s, 3' % (s(sRb[b]), s(sRb[b])))
    consts2()
    xt1 += [xdma(i, 0) for i in range(4, 16)]
    for b in range(4):
        for tile in (1, 2): kv0 = wdma(tile, 0, b)
    def xread(half):
        for ks in range(16):
            t = lds('ds_read_b128 %s, %s offset:%d' % (v(vX + 4 * (16 * half + ks), 4), v(16 + (ks & 7)), (ks >> 3) * 256))
        return t
    wait(vm=xt1[-1])
    stamp('x1')
    Lz = newlab('z')
    A('s_lshl_b32 %s, s2, 2' % s(sT1)); A('s_or_b32 %s, %s, %s' % (s(sT1), s(sT1), s(sW)))
    A('s_cmp_lg_u32 %s, 3' % s(sT1))
    A('s_cbranch_scc1 %s' % Lz)
    A('s_waitcnt vmcnt(0)')
    A('v_mov_b32 v68, 1'); A('s_mov_b64 exec, 1')
    A('buffer_store_dword v68, off, %s, 0 sc0 sc1' % s(SDBG, 4))
    A('s_mov_b64 exec, -1')
    A('s_waitcnt vmcnt(0)')
    A.label(Lz)
    t = xread(0)
    for r in range(11, 16): A('v_mov_b32 %s, 0' % v(r))
    A('s_lshl_b32 %s, %s, 12' % (s(sT0), s(sW)))
    A('v_add_u32 v10, %s, %s' % (s(sT0), v(vW0)))
    A('v_and_b32 v66, 31, %s' % v(vLane)); A('v_lshlrev_b32 v66, 5, v66')
    A('v_lshrrev_b32 v9, 5, %s' % v(vLane)); A('v_lshl_add_u32 v9, v9, 2, v66')
    A('s_lshl_b32 %s, %s, 3' % (s(sT0), s(sW))); A('s_add_u32 %s, %s, 0x%x' % (s(sT0), s(sT0), L_CSP))
    A('v_add_u32 v9, %s, v9' % s(sT0))
    wait(lg=t)
    def dots(half):
        o = []
        for r in range(64):
            x = v(vX + 64 * half + r)
            o.append('v_dot2c_f32_bf16 v14, %s, %s' % (ONE, x)); o.append('v_dot2c_f32_bf16 v15, %s, %s' % (x, x))
        return o
    xt2 = []
    sprinkle(dots(0), [lambda i=i: xt2.append(xdma(i, 1)) for i in range(16)])
    wait(vm=kv0)
    barrier()
    stamp('kv0')
    def cs_half(half, bases=(96, 112)):
        tk = {}
        o = []
        def rd():
            for t_ in range(2):
                for k in range(4):
                    d = bases[t_] + k * 4
                    off = WREG[0][1 + t_] + half * 16384 + k * 1024
                    lds('ds_read_b64_tr_b16 %s, v10 offset:%d' % (v(d, 2), off))
                    tk[(t_, k)] = lds('ds_read_b64_tr_b16 %s, v10 offset:%d' % (v(d + 2, 2), off + 256))
        o.append(rd)
        for t_ in range(2):
            for k in range(4):
                o.append(lambda t_=t_, k=k: wait(lg=tk[(t_, k)]))
                for j in range(4): o.append('v_dot2c_f32_bf16 %s, %s, %s' % (v(12 + t_), ONE, v(bases[t_] + k * 4 + j)))
        return o
    st = {}
    later = []
    for b in range(4):
        for tile in (1, 2):
            def f(tile=tile, b=b): st['kv1'] = wdma(tile, 1, b)
            later.append(f)
    qt = {}
    for i in range(8):
        def f(i=i):
            w_soff(0, i >> 2, i & 3)
            qt[i] = vmem('buffer_load_dwordx4 %s, %s, %s, %s offen' % (a(AW[0] + 4 * i, 4), v(vDmaW), s(SWQA, 4), s(sT2)))
        later.append(f)
    def f(): st['dbg'] = vmem('buffer_load_dword v8, off, %s, 0 sc1' % s(SDBG, 4))
    later.append(f)
    ring = lambda ks: vT + 8 * (ks % 3)
    wt = {}
    sprinkle(cs_half(0), later[:3])
    later = later[3:]
    def half_pass(k0, fill):
        for ks in range(k0, k0 + 2):
            trfrag(ring(ks), R1, ks); wt[ks] = trfrag(ring(ks) + 4, R2, ks)
        slot = 0
        for ks in range(k0, k0 + 16):
            if ks + 2 < k0 + 16:
                trfrag(ring(ks + 2), R1, ks + 2); wt[ks + 2] = trfrag(ring(ks + 2) + 4, R2, ks + 2)
            wait(lg=wt[ks])
            X = v(vX + 4 * ks, 4); Wk = v(ring(ks), 4); Wv = v(ring(ks) + 4, 4)
            mfma(v(vAK, 16), Wk, X, '0' if ks == 0 else v(vAK, 16))
            for f in fill.get(slot, []): f()
            slot += 1
            mfma(v(vAV, 16), X, Wv, '0' if ks == 0 else v(vAV, 16))
            for f in fill.get(slot, []): f()
            slot += 1
    half_pass(0, {2 * i + 1: [f] for i, f in enumerate(later)})
    wait(vm=xt2[-1])
    stamp('x2')
    t = xread(1)
    wait(lg=t)
    for x in dots(1): A(x)
    A('s_mov_b32 %s, %s' % (s(sONE), ONE))
    F = stats_fns(0, st, csb=(0, 112, 120))
    A('v_mov_b32 v96, v14'); A('v_mov_b32 v97, v15'); A('v_mov_b32 v98, v14'); A('v_mov_b32 v99, v15')
    for n in 'CDEF': F[n]()
    for i in range(4): F['G'](i)()
    for b in range(4):
        pass
    wait(vm=st['kv1'])
    barrier()
    stamp('kv1')
    for x in cs_half(1, (64, 112)):
        if callable(x): x()
        else: A(x)
    for t_ in range(2): lds('ds_write_b32 v9, %s offset:%d' % (v(12 + t_), (1 + t_) * 1024))
    fill = {}
    def add(slot, fn): fill.setdefault(slot, []).append(fn)
    add(2, F['cs2a'])
    add(3, F['cs2b'](1)); add(4, F['cs2b'](2))
    add(8, F['cs2c'](1)); add(10, F['cs2c'](2))
    add(12, F['H'])
    for i in range(4): add(13 + i, F['I'](i))
    for i in range(8):
        def f(i=i):
            A('s_lshl_b32 %s, %s, 12' % (s(sT3), s(sRb[i & 3]))); A('s_add_u32 %s, %s, %s' % (s(sT3), s(sT3), s(sM0)))
            A('v_add_u32 v14, %s, v15' % s(sT3))
            wait(vm=qt[i])
            lds('ds_write_b128 v14, %s offset:%d' % (a(AW[0] + 4 * i, 4), (i >> 2) * 16384))
        add(17 + 2 * i - (1 if i == 7 else 0), f)
    A('v_add_u32 v15, %d, %s' % (WREG[0][0], v(vL16)))
    half_pass(16, fill)
    wait(lg=st['bc'])
    stamp('pass1_0')
    ln_T(vAK, vCSA, vRstd, vMr)
    pack(vAK)
    ln_N(vAV, vCsV)
    pack(vAV)
    return st

TOUCH = optval('touch', 1)
PRET = optval('pret', 1)
def touch_w(srdw, sw, nw, vd):
    A('s_lshr_b32 %s, s2, 3' % s(sT3))
    A('v_lshrrev_b32 v64, 4, %s' % v(vLane)); A('v_mul_u32_u24 v64, 3072, v64')
    A('v_and_b32 v65, 15, %s' % v(vLane)); A('v_lshl_add_u32 v64, v65, 7, v64')
    A('v_lshrrev_b32 v65, 3, %s' % v(vLane)); A('v_mul_u32_u24 v65, 3072, v65')
    A('v_and_b32 v66, 7, %s' % v(vLane)); A('v_lshl_add_u32 v65, v66, 7, v65')
    A('s_mul_i32 %s, %s, %d' % (s(sT1), s(sT3), 4 * 3072))
    A('s_mul_i32 %s, %s, %d' % (s(sT2), s(sw), 128 * 3072))
    A('s_add_u32 %s, %s, %s' % (s(sT2), s(sT2), s(sT1)))
    for i in range(4 // nw):
        A('s_add_u32 %s, %s, %d' % (s(sG), s(sT2), 1024 + i * nw * 128 * 3072))
        vmem('buffer_load_dword %s, v64, %s, %s offen' % (vd, s(srdw, 4), s(sG)))
    A('s_lshl_b32 %s, %s, 1' % (s(sT2), s(sT2)))
    vmem('buffer_load_dword %s, v65, %s, %s offen' % (vd, s(srdw, 4), s(sT2)))
def touch_wo(srdw, sw, vd):
    A('s_lshr_b32 %s, s2, 3' % s(sT3))
    A('v_lshlrev_b32 v66, 7, %s' % v(vLane))
    A('s_lshl_b32 %s, %s, 13' % (s(sT1), s(sT3)))
    A('s_lshl_b32 %s, %s, 18' % (s(sT2), s(sw)))
    A('s_add_u32 %s, %s, %s' % (s(sT2), s(sT2), s(sT1)))
    vmem('buffer_load_dword %s, v66, %s, %s offen' % (vd, s(srdw, 4), s(sT2)))

def statst():
    A('s_lshr_b32 %s, %s, 1' % (s(sT0), s(sC))); A('s_and_b32 %s, %s, 3' % (s(sT0), s(sT0))); A('s_lshl_b32 %s, %s, 10' % (s(sT0), s(sT0)))
    A('s_lshr_b32 %s, %s, 3' % (s(sT1), s(sC))); A('s_lshl_b32 %s, %s, 9' % (s(sT1), s(sT1))); A('s_add_u32 %s, %s, %s' % (s(sT0), s(sT0), s(sT1)))
    A('s_and_b32 %s, %s, 1' % (s(sT1), s(sC))); A('s_lshl_b32 %s, %s, 3' % (s(sT1), s(sT1))); A('s_add_u32 %s, %s, %s' % (s(sT0), s(sT0), s(sT1)))
    A('s_add_u32 %s, %s, 0x%x' % (s(sT0), s(sT0), XSTAT))
    A('v_add_u32 %s, %s, %s' % (v(vStatSt), s(sT0), v(vL16)))
    A('s_mov_b32 %s, 0' % s(sUP)); A('s_mov_b32 %s, -1' % s(sUP + 1))
    A('v_mov_b32 v67, 0x%x' % OOB)
    A('v_cndmask_b32 %s, %s, v67, %s' % (v(vStatSt), v(vStatSt), s(sUP, 2)))

def cs_stage1(typ):
    A('s_lshl_b32 %s, %s, 13' % (s(sT0), s(sW)))
    A('v_add_u32 v64, %s, %s' % (s(sT0), v(vW0)))
    A('v_add_u32 v65, %s, %s' % (s(sT0), v(vW2)))
    for t in range(3): A('v_mov_b32 %s, 0' % v(68 + t))
    toks = {}
    order = [(t, k) for t in range(3) for k in range(8)]
    def rd(t, k):
        reg = WREG[typ][t]
        base, off = (64, reg) if reg < 65536 else (65, reg - 65536)
        d = vX + (t * 8 + k) * 4
        lds('ds_read_b64_tr_b16 %s, %s offset:%d' % (v(d, 2), v(base), off + k * 1024))
        toks[(t, k)] = lds('ds_read_b64_tr_b16 %s, %s offset:%d' % (v(d + 2, 2), v(base), off + k * 1024 + 512))
    for i in range(6): rd(*order[i])
    A('v_and_b32 v66, 31, %s' % v(vLane)); A('v_lshlrev_b32 v66, 5, v66')
    A('v_lshrrev_b32 v67, 5, %s' % v(vLane)); A('v_lshl_add_u32 v67, v67, 2, v66')
    A('s_lshl_b32 %s, %s, 3' % (s(sT0), s(sW))); A('s_add_u32 %s, %s, 0x%x' % (s(sT0), s(sT0), L_CSP))
    A('v_add_u32 v67, %s, v67' % s(sT0))
    for i, (t, k) in enumerate(order):
        if i + 6 < 24: rd(*order[i + 6])
        wait(lg=toks[(t, k)])
        d = vX + (t * 8 + k) * 4
        for j in range(4):
            A('v_dot2c_f32_bf16 %s, %s, %s' % (v(68 + t), s(sONE), v(d + j)))
    for t in range(3):
        lds('ds_write_b32 v67, %s offset:%d' % (v(68 + t), t * 1024))

def padd(d, x, y):
    A('v_add_f32 %s, %s, %s' % (v(d), v(x), v(y))); A('v_add_f32 %s, %s, %s' % (v(d + 1), v(x + 1), v(y + 1)))
def ln_T(acc, cs, rs, mr):
    for p in range(8):
        A('v_pk_mul_f32 %s, %s, %s op_sel_hi:[1,0]' % (v(acc + 2 * p, 2), v(acc + 2 * p, 2), v(rs, 2)))
    for p in range(8):
        A('v_pk_fma_f32 %s, %s, %s, %s op_sel_hi:[1,0,1] neg_lo:[0,1,0] neg_hi:[0,1,0]' % (v(acc + 2 * p, 2), v(cs + 2 * p, 2), v(mr, 2), v(acc + 2 * p, 2)))
def ln_N(acc, csn):
    for p in range(8):
        A('v_pk_mul_f32 %s, %s, %s' % (v(acc + 2 * p, 2), v(acc + 2 * p, 2), v(vRSB + 2 * p, 2)))
    for p in range(8):
        A('v_pk_fma_f32 %s, %s, %s, %s op_sel_hi:[1,0,1] neg_lo:[0,1,0] neg_hi:[0,1,0]' % (v(acc + 2 * p, 2), v(vMRB + 2 * p, 2), v(csn, 2), v(acc + 2 * p, 2)))
def pack(acc, dst=None):
    dst = acc if dst is None else dst
    for d in range(8):
        A('v_cvt_pk_bf16_f32 %s, %s, %s' % (v(dst + d), v(acc + 2 * d), v(acc + 2 * d + 1)))
def phi(acc, tmp):
    A('s_mov_b32 %s, 0x%08x' % (s(sT0), f2u(math.log2(math.e))))
    A('s_mov_b32 %s, 0x%08x' % (s(sT1), f2u(math.log2(math.e))))
    A('s_mov_b32 %s, 0x%08x' % (s(sT2), f2u(1e-6)))
    A('s_mov_b32 %s, 0x%08x' % (s(sT3), f2u(1e-6)))
    for p in range(8):
        A('v_pk_mul_f32 %s, %s, %s' % (v(tmp + 2 * p, 2), v(acc + 2 * p, 2), s(sT0, 2)))
    for r in range(16):
        A('v_exp_f32_e64 %s, %s clamp' % (v(tmp + r), v(tmp + r)))
        A('v_max_f32 %s, 0, %s' % (v(acc + r), v(acc + r)))
    for p in range(8):
        A('v_pk_add_f32 %s, %s, %s' % (v(acc + 2 * p, 2), v(acc + 2 * p, 2), v(tmp + 2 * p, 2)))
    for p in range(8):
        A('v_pk_add_f32 %s, %s, %s' % (v(acc + 2 * p, 2), v(acc + 2 * p, 2), s(sT2, 2)))

def stats_fns(typ, st, csb=(16, 24, 112)):
    def statsA():
        wait(vm=st['tok'])
        for j in range(3): padd(96 + 4 * j, 96 + 4 * j, 98 + 4 * j)
    def statsB():
        padd(108, 108, 110); padd(96, 96, 100); padd(104, 104, 108)
    def statsB2():
        padd(96, 96, 104)
        A('v_mov_b32 v98, v96'); A('v_mov_b32 v99, v97')
    def statsC():
        A('v_permlane32_swap_b32 v98, v96'); A('v_permlane32_swap_b32 v99, v97')
        padd(96, 96, 98)
        A('v_mul_f32 v96, 0x%08x, v96' % f2u(1 / 512)); A('v_mul_f32 v97, 0x%08x, v97' % f2u(1 / 512))
    def statsD():
        A('v_fma_f32 v97, -v96, v96, v97')
        A('v_max_f32 v97, 0, v97')
        A('v_add_f32 v97, 0x%08x, v97' % EPS)
        A('v_rsq_f32 %s, v97' % v(vRstd))
    def statsE():
        A('v_mul_f32 %s, v96, %s' % (v(vMr), v(vRstd)))
        A('s_lshl_b32 %s, %s, 8' % (s(sT1), s(sW))); A('s_add_u32 %s, %s, %d' % (s(sT1), s(sT1), L_ROW))
        A('v_lshl_add_u32 v98, %s, 2, %s' % (v(vLane), s(sT1)))
        A('v_cndmask_b32 v99, %s, %s, %s' % (v(vRstd), v(vMr), s(sUP, 2)))
    def statsF():
        st['w'] = lds('ds_write_b32 v98, v99')
        A('v_lshrrev_b32 v89, 5, %s' % v(vLane))
        A('v_lshlrev_b32 v91, 4, v89')
        A('v_add_u32 v89, %s, v91' % s(sT1))
        A('v_add_u32 v91, 0x%x, v91' % (L_CS + typ * 384))
    def statsG(i):
        def f():
            lds('ds_read_b128 %s, v89 offset:%d' % (v(vRSB + 4 * i, 4), i * 32))
            st['bc'] = lds('ds_read_b128 %s, v89 offset:%d' % (v(vMRB + 4 * i, 4), 128 + i * 32))
        return f
    def statsH():
        A('v_and_b32 v93, 31, %s' % v(vLane)); A('v_lshlrev_b32 v93, 2, v93')
        A('v_add_u32 v93, 0x%x, v93' % (L_CS + typ * 384))
        st['bc'] = lds('ds_read_b32 %s, v93 offset:256' % v(vCsV))
        if typ == 1: st['bc'] = lds('ds_read_b32 %s, v93 offset:128' % v(vCsK))
    def statsI(i):
        def f():
            st['bc'] = lds('ds_read_b128 %s, v91 offset:%d' % (v(vCSA + 4 * i, 4), 128 + i * 32))
        return f
    def cs2a():
        barrier()
        A('v_and_b32 v92, 31, %s' % v(vLane)); A('v_lshlrev_b32 v93, 5, v92')
        A('v_add_u32 v93, 0x%x, v93' % L_CSP)
        A('v_lshlrev_b32 v92, 2, v92'); A('v_add_u32 v92, 0x%x, v92' % (L_CS + typ * 384))
    def cs2b(t):
        def f():
            lds('ds_read_b128 %s, v93 offset:%d' % (v(csb[t], 4), t * 1024))
            st['cs%d' % t] = lds('ds_read_b128 %s, v93 offset:%d' % (v(csb[t] + 4, 4), t * 1024 + 16))
        return f
    def cs2c(t):
        def f():
            b = csb[t]
            wait(lg=st['cs%d' % t])
            padd(b, b, b + 2); padd(b + 4, b + 4, b + 6); padd(b, b, b + 4)
            A('v_add_f32 %s, %s, %s' % (v(b), v(b), v(b + 1)))
            lds('ds_write_b32 v92, %s offset:%d' % (v(b), t * 128))
        return f
    return dict(A=statsA, B=statsB, B2=statsB2, C=statsC, D=statsD, E=statsE, F=statsF, G=statsG, H=statsH, I=statsI, cs2a=cs2a, cs2b=cs2b, cs2c=cs2c)

def qkv(L):
    typ = L & 1
    wait_all(vm=False)
    barrier()
    if L < 2: cs_stage1(typ)
    stamp('pre%d' % L)
    ring = lambda ks: vT + 8 * (ks % 3)
    wt = {}
    for ks in range(2):
        trfrag(ring(ks), R1, ks); wt[ks] = trfrag(ring(ks) + 4, R2, ks)
    poll(vFlagG, SWS, sPh, 96)
    st = {}
    xt = {}
    def ld_stats():
        A('s_add_u32 %s, %s, 0x%x' % (s(sT1), s(sSt), XSTAT))
        for j in range(4):
            st['tok'] = vmem('buffer_load_dwordx4 %s, %s, %s, %s offen offset:%d sc1' % (v(96 + 4 * j, 4), v(vL16), s(SWS, 4), s(sT1), j * 1024))
    for ks in range(4): xt[ks] = gload(ks, sXb)
    A('s_add_u32 %s, %s, 0x100' % (s(sPh), s(sPh)))
    stamp('xpoll%d' % L)
    for ks in range(4, AHEAD): xt[ks] = gload(ks, sXb)
    fill = {}
    def add(slot, fn): fill.setdefault(slot, []).append(fn)
    F = stats_fns(typ, st)
    if L < 2:
        for i, f in enumerate([F['cs2a']] + [F['cs2b'](t) for t in range(3)]): add(4 + 2 * i, f)
        for t in range(3): add(14 + 2 * t, F['cs2c'](t))
    add(1, ld_stats)
    seq = [F[n] for n in ['A', 'B', 'B2', 'C', 'D', 'E', 'F']] + [F['G'](i) for i in range(4)] + [F['H']]
    if typ == 0: seq += [F['I'](i) for i in range(4)]
    for i, f in enumerate(seq): add(26 + 2 * i, f)
    slot = 0
    for ks in range(32):
        if ks + 2 < 32:
            trfrag(ring(ks + 2), R1, ks + 2); wt[ks + 2] = trfrag(ring(ks + 2) + 4, R2, ks + 2)
        wait(vm=xt[ks], lg=wt[ks])
        X = v(vX + 4 * ks, 4); Wk = v(ring(ks), 4); Wv = v(ring(ks) + 4, 4)
        cK = '0' if ks == 0 else v(vAK, 16); cV = '0' if ks == 0 else v(vAV, 16)
        if typ == 0: mfma(v(vAK, 16), Wk, X, cK)
        else: mfma(v(vAK, 16), X, Wk, cK)
        for f in fill.get(slot, []): f()
        slot += 1
        mfma(v(vAV, 16), X, Wv, cV)
        if ks + AHEAD < 32: xt[ks + AHEAD] = gload(ks + AHEAD, sXb)
        for f in fill.get(slot, []): f()
        slot += 1
    ring2 = lambda ks: vT + 4 * (ks % 4)
    wq = {}
    for ks in range(3): wq[ks] = trfrag(ring2(ks), WREG[typ][0], ks)
    wait(lg=st['bc'])
    stamp('pass1_%d' % L)
    if typ == 0:
        ln_T(vAK, vCSA, vRstd, vMr)
        pack(vAK)
    else:
        ln_N(vAK, vCsK)
    ln_N(vAV, vCsV)
    pack(vAV)
    return wq, ring2, st

def pass2(typ, wq, ring2, fill):
    for ks in range(32):
        if ks + 3 < 32: wq[ks + 3] = trfrag(ring2(ks + 3), WREG[typ][0], ks + 3)
        wait(lg=wq[ks])
        mfma(v(vAQ, 16), v(ring2(ks), 4), v(vX + 4 * ks, 4), '0' if ks == 0 else v(vAQ, 16))
        for f in fill.get(ks, []): f()

def common_fill(fill, st, at=2, res=True):
    for i in range(4):
        def f(i=i):
            st['csq'] = lds('ds_read_b128 %s, v91 offset:%d' % (v(vCSA + 4 * i, 4), i * 32))
        fill.setdefault(at + i, []).append(f)
    def ld_res():
        for j in range(2):
            st['res'] = vmem('buffer_load_dwordx4 %s, %s, %s, %s offen offset:%d sc1' % (v(vRES + 4 * j, 4), v(vL16), s(SWS, 4), s(sOwn), j * 1024))
    if res: fill.setdefault(0, []).append(ld_res)

def dbg_q():
    A('s_add_u32 %s, %s, 0x%x' % (s(sHalo0), s(sOwn), OBUF))
    A('buffer_store_dwordx4 v[16:19], %s, %s, %s offen' % (v(vL16), s(SWS, 4), s(sHalo0)))
    A('buffer_store_dwordx4 v[20:23], %s, %s, %s offen offset:1024' % (v(vL16), s(SWS, 4), s(sHalo0)))

def layerA(L):
    if L == 0:
        st = qkv0()
        Lok = newlab('zok')
        wait(vm=st['dbg'])
        A('v_readfirstlane_b32 %s, v8' % s(sT0))
        A('s_cmp_lg_u32 %s, 0' % s(sT0))
        A('s_cbranch_scc1 %s' % Lok)
        A('v_mov_b32 v96, 0'); A('s_mov_b32 %s, 1' % s(sT1))
        poll(96, SDBG, sT1, 97)
        A.label(Lok)
    else:
        wq, ring2, st = qkv(L)
    A('s_lshl_b32 %s, %s, 4' % (s(sT0), s(sT))); A('s_add_u32 %s, %s, %s' % (s(sT0), s(sT0), s(sC)))
    A('s_lshl_b32 %s, %s, 12' % (s(sT0), s(sT0))); A('s_add_u32 %s, %s, 0x%x' % (s(sT0), s(sT0), KVBUF))
    srcs = [vAK, vAK + 4, vAV, vAV + 4]
    for j in range(4):
        kvtok = vmem('buffer_store_dwordx4 %s, %s, %s, %s offen offset:%d sc0 sc1' % (v(srcs[j], 4), v(vL16), s(SWS, 4), s(sT0), j * 1024))
    for j in range(4):
        lds('ds_write_b128 %s, %s offset:%d' % (v(vKV), v(srcs[j], 4), 32768 + j * 1024))
    A('s_mov_b32 %s, %d' % (s(sCPh), L + 1))
    fill = {}
    if L == 0:
        SLOW_ONLY[0] = True
        flag_g(sGF, drain=False)
        SLOW_ONLY[0] = False
        A('s_lshl_b32 %s, %s, 13' % (s(sT0), s(sW)))
        A('v_add_u32 v10, %s, %s' % (s(sT0), v(vW2)))
        wait_all(vm=False)
        barrier()
        tk = []
        for k in range(8):
            lds('ds_read_b64_tr_b16 %s, v10 offset:%d' % (v(96 + 4 * k, 2), WREG[0][0] - 65536 + k * 1024))
            tk.append(lds('ds_read_b64_tr_b16 %s, v10 offset:%d' % (v(98 + 4 * k, 2), WREG[0][0] - 65536 + k * 1024 + 256)))
        ring2 = lambda ks: vT + 4 * (ks % 4)
        wq = {}
        for k in range(8):
            wait(lg=tk[k])
            for j in range(4): A('v_dot2c_f32_bf16 v11, %s, %s' % (s(sONE), v(96 + 4 * k + j)))
        lds('ds_write_b32 v9, v11')
        for ks in range(3): wq[ks] = trfrag(ring2(ks), WREG[0][0], ks)
        F = stats_fns(0, st, csb=(100, 0, 0))
        fill[3] = [F['cs2a']]; fill[4] = [F['cs2b'](0)]; fill[7] = [F['cs2c'](0)]
        common_fill(fill, st, at=9, res=False)
    else:
        common_fill(fill, st)
    def flagH():
        A('s_lshl_b32 %s, %s, 4' % (s(sT0), s(sC))); A('s_add_u32 %s, %s, %s' % (s(sT0), s(sT0), s(sR)))
        A('s_lshl_b32 %s, %s, 5' % (s(sT0), s(sT0))); A('s_add_u32 %s, %s, %s' % (s(sT0), s(sT0), s(sW)))
        A('s_lshl_b32 %s, %s, 2' % (s(sT0), s(sT0))); A('s_add_u32 %s, %s, 0x%x' % (s(sT0), s(sT0), HFLAG))
        A('v_mov_b32 v96, %s' % s(sCPh))
        wait(vm=kvtok)
        A('s_mov_b64 exec, 1')
        vmem('buffer_store_dword v96, off, %s, %s sc0 sc1' % (s(SWS, 4), s(sT0)))
        A('s_mov_b64 exec, -1')
    fill.setdefault(12 if L == 0 else 20, []).append(flagH)
    def qs():
        A('v_mul_f32 %s, 0x%08x, %s' % (v(vRstd), QS, v(vRstd)))
        A('v_mul_f32 %s, 0x%08x, %s' % (v(vMr), QS, v(vMr)))
    fill.setdefault(1, []).append(qs)
    pass2(0, wq, ring2, fill)
    wait(lg=st['csq'])
    ln_T(vAQ, vCSA, vRstd, vMr)
    pack(vAQ)
    if L == 0:
        TR2[0] = 512
        wbase(False)
    stamp('pass2_%d' % L)
    if STOP == 1 and L == 0: dbg_q(); ckpt(1)
    A('s_lshr_b32 %s, %s, 1' % (s(sT0), s(sW)))
    A('s_add_u32 %s, %s, %s' % (s(sT0), s(sT0), s(sR)))
    Lno = newlab('nohalo')
    A('s_mov_b32 %s, 0x%x' % (s(sHalo0), OOB))
    A('s_cmp_lt_u32 %s, 2' % s(sT0))
    A('s_cbranch_scc1 %s' % Lno)
    A('s_sub_u32 %s, %s, 2' % (s(sT0), s(sT0)))
    A('s_lshl_b32 %s, %s, 4' % (s(sT1), s(sC))); A('s_add_u32 %s, %s, %s' % (s(sT1), s(sT1), s(sT0)))
    A('s_lshl_b32 %s, %s, 7' % (s(sT1), s(sT1))); A('s_add_u32 %s, %s, 0x%x' % (s(sT1), s(sT1), HFLAG))
    A('s_and_b32 %s, %s, 1' % (s(sT2), s(sW))); A('s_lshl_b32 %s, %s, 3' % (s(sT3), s(sT2))); A('s_add_u32 %s, %s, %s' % (s(sT1), s(sT1), s(sT3)))
    A('v_and_b32 v96, 1, %s' % v(vLane)); A('v_lshlrev_b32 v96, 2, v96')
    A('s_lshl_b32 %s, %s, 2' % (s(sT0), s(sT0))); A('s_lshl_b32 %s, %s, 1' % (s(sT2), s(sT2))); A('s_add_u32 %s, %s, %s' % (s(sT0), s(sT0), s(sT2)))
    A('s_lshl_b32 %s, %s, 4' % (s(sT0), s(sT0))); A('s_add_u32 %s, %s, %s' % (s(sT0), s(sT0), s(sC)))
    A('s_lshl_b32 %s, %s, 12' % (s(sT0), s(sT0))); A('s_add_u32 %s, %s, 0x%x' % (s(sHalo0), s(sT0), KVBUF))
    poll(96, SWS, sCPh, 97, soff=s(sT1))
    A.label(Lno)
    VM.reset()
    A('s_add_u32 %s, %s, 65536' % (s(sHalo1), s(sHalo0)))
    A('s_lshl_b32 %s, %s, 13' % (s(sT0), s(sW)))
    for i in range(2):
        A('s_add_u32 m0, %s, %d' % (s(sT0), L_KV + i * 4096))
        for j in range(4):
            vmem('buffer_load_dwordx4 %s, %s, %s offen offset:%d sc1 lds' % (v(vL16), s(SWS, 4), s(sHalo0 + i), j * 1024))
    halotok = VM.n
    if L == 0:
        img_addr()
        for i in range(8, 24):
            tile, blk = divmod(i, 8)
            img_read(AW[0] + 4 * i, WREG[0][tile], blk)
    stamp('halopoll%d' % L)
    PM = 24; VR = 32; OA = 48; KF = 64; PF = 100
    M = 108
    A('v_mov_b32 v108, 0xffff'); A('v_mov_b32 v109, 0xffff0000')
    for d in range(8):
        A('v_cndmask_b32 %s, 0, v108, %s' % (v(PM + d), s(sMASK + 4 * d, 2)))
        A('v_cndmask_b32 v110, 0, v109, %s' % s(sMASK + 4 * d + 2, 2))
        A('v_or_b32 %s, %s, v110' % (v(PM + d), v(PM + d)))
    for i in range(16): A('v_mov_b32 %s, %s' % (v(VR + i), s(sONE)))
    A('s_add_u32 %s, %s, 0x%x' % (s(sHalo0), s(sOwn), OBUF))
    A('s_lshl_b32 %s, %s, 14' % (s(sHalo1), s(sW)))
    if L == 0:
        poll(vFlagG, SWS, sPh, 96)
        A('v_and_b32 v96, 0xff, v96')
        A('v_cmp_eq_u32 vcc, %s, v96' % s(sXcc))
        A('s_cmp_eq_u64 vcc, exec')
        A('s_cselect_b32 %s, %d, 0' % (s(sFast), 0 if FORCE_SLOW else 1))
        A('s_add_u32 %s, %s, 0x100' % (s(sPh), s(sPh)))
    wait(vm=halotok); wait_all(vm=False)
    barrier()
    stamp('halo%d' % L)
    if L == 0:
        A('v_and_b32 v64, 15, %s' % v(vLane)); A('v_lshlrev_b32 v64, 7, v64')
        A('v_add_u32 v64, %s, v64' % s(sOwn))
        A('v_add_u32 v65, 0x%x, v64' % OBUF)
        A('v_cndmask_b32 v64, v64, v65, %s' % s(sHALF, 2))
        A('s_lshl_b32 %s, %s, 8' % (s(sT0), s(sC))); A('s_add_u32 %s, %s, %s' % (s(sT0), s(sT0), s(sSt)))
        A('s_add_u32 %s, %s, 0x%x' % (s(sT0), s(sT0), XSTAT))
        A('v_and_b32 v65, 1, %s' % v(vLane)); A('v_lshl_add_u32 v65, v65, 7, %s' % s(sT0))
        A('v_cndmask_b32 v64, v64, v65, %s' % s(sUP, 2))
        A('s_mov_b32 exec_hi, 3')
        vmem('buffer_load_dword a255, v64, %s, 0 offen sc1' % s(SWS, 4))
        A('s_mov_b64 exec, -1')
        A('v_and_b32 v64, 31, %s' % v(vLane)); A('v_lshlrev_b32 v64, 10, v64')
        A('v_lshrrev_b32 v65, 5, %s' % v(vLane)); A('v_lshl_add_u32 v64, v65, 4, v64')
        A('s_lshl_b32 %s, %s, 6' % (s(sT0), s(sC))); A('s_add_u32 %s, %s, %s' % (s(sT0), s(sT0), s(sXb)))
        vmem('buffer_load_dwordx4 %s, v64, %s, %s offen' % (v(vRES, 4), s(SX, 4), s(sT0)))
        vmem('buffer_load_dwordx4 %s, v64, %s, %s offen offset:32' % (v(vRES + 4, 4), s(SX, 4), s(sT0)))
    T = lambda j: 112 + 16 * j
    jobs = []
    wo_tok = {}
    def wo_off():
        A('v_lshrrev_b32 v111, 2, %s' % v(vLane)); A('v_lshlrev_b32 v111, 11, v111'); A('v_sub_u32 v111, %s, v111' % v(vDmaW))
    if L == 0:
        for tile, i in [(t, b) for b in range(8) for t in (1, 2)] + [(0, b) for b in range(8)]:
            def f(tile=tile, i=i):
                w_soff(tile, i >> 2, i & 3)
                vmem('buffer_load_dwordx4 %s, %s, %s, %s offen' % (a(AW[1] + 4 * (tile * 8 + i), 4), v(vDmaW), s(SWQB, 4), s(sT2)))
            jobs.append(f)
        for ty, sr in ((0, SWOA), (1, SWOB)):
            for i in range(8):
                def f(i=i, ty=ty, sr=sr):
                    wo_soff(i >> 2, i & 3)
                    vmem('buffer_load_dwordx4 %s, v111, %s, %s offen' % (a(AWO[ty] + 4 * i, 4), s(sr, 4), s(sT2)))
                jobs.append(f)
    sBad = sLkv
    A('s_mov_b64 %s, 0' % s(sBad, 2))
    wo_off()
    def kload_(u, j): return lds('ds_read_b128 %s, %s offset:%d' % (v(KF + 4 * j, 4), v(vKV), j * 4096 + u * 1024))
    def vload_(u, j, slot):
        A('s_mov_b64 exec, %s' % s(sHALF, 2))
        lds('ds_read_b128 %s, %s offset:%d' % (v(VR + 8 * slot, 4), v(vKV), j * 4096 + 2048 + u * 256))
        t = lds('ds_read_b128 %s, %s offset:%d' % (v(VR + 8 * slot + 4, 4), v(vKV), j * 4096 + 3072 + u * 256))
        A('s_mov_b64 exec, -1')
        return t
    def merge():
        return ['v_cndmask_b32 %s, %s, %s, %s' % (v(T(8) + r), v(T(0) + r), v(T(8) + r), s(sMASK + 2 * r, 2)) for r in range(16)]
    def maxops(j, m0, m1, first=False):
        o = []
        for p in range(8):
            m = (m0, m1)[p & 1]
            if first and p < 2: o.append('v_max_f32 %s, %s, %s' % (v(m), v(T(j) + 2 * p), v(T(j) + 2 * p + 1)))
            else: o.append('v_max3_f32 %s, %s, %s, %s' % (v(m), v(m), v(T(j) + 2 * p), v(T(j) + 2 * p + 1)))
        return o
    def maxfin(m0, m1):
        return ['v_max_f32 %s, %s, %s' % (v(m0), v(m0), v(m1)), 'v_mov_b32 %s, %s' % (v(m1), v(m0)),
                'v_permlane32_swap_b32 %s, %s' % (v(m1), v(m0)), 'v_max_f32 %s, %s, %s' % (v(m0), v(m0), v(m1)),
                'v_sub_f32 %s, 0, %s' % (v(m0), v(m0))]
    def addm(j, nm): return ['v_pk_add_f32 %s, %s, %s op_sel_hi:[1,0]' % (v(T(j) + 2 * p, 2), v(T(j) + 2 * p, 2), v(nm, 2)) for p in range(8)]
    def exps(j): return ['v_exp_f32 %s, %s' % (v(T(j) + r), v(T(j) + r)) for r in range(16)]
    def cvts(j): return ['v_cvt_pk_bf16_f32 %s, %s, %s' % (v(T(j) + d), v(T(j) + 2 * d), v(T(j) + 2 * d + 1)) for d in range(8)]
    def split():
        o = []
        for d in range(8):
            o.append('v_bfi_b32 %s, %s, 0, %s' % (v(PF + d), v(PM + d), v(T(8) + d)))
            o.append('v_and_b32 %s, %s, %s' % (v(T(8) + d), v(PM + d), v(T(8) + d)))
        return o
    def ofin(u, check):
        o = ['v_rcp_f32 %s, %s' % (v(OA + 9), v(OA + 8))]
        if check:
            o += ['v_cmp_ngt_f32 vcc, 0x%08x, %s' % (f2u(2.0 ** (100 if not FORCE_FB else FORCE_FB)), v(OA + 8)), 's_or_b64 %s, %s, vcc' % (s(sBad, 2), s(sBad, 2))]
        if check == 2:
            o += ['v_cmp_nlt_f32 vcc, 0x%08x, %s' % (f2u(2.0 ** -100), v(OA + 8)), 's_or_b64 %s, %s, vcc' % (s(sBad, 2), s(sBad, 2))]
        o += ['v_mul_f32 %s, %s, %s' % (v(OA + r), v(OA + r), v(OA + 9)) for r in range(8)]
        o += ['v_cvt_pk_bf16_f32 %s, %s, %s' % (v(OA + 12 + d), v(OA + 2 * d), v(OA + 2 * d + 1)) for d in range(4)]
        def sto(sc):
            vmem('buffer_store_dwordx4 %s, %s, %s, %s offen offset:%d%s' % (v(OA + 12, 4), v(vL16), s(SWS, 4), s(sHalo0), u * 1024, sc))
        o.append(lambda: dual(sto))
        return o
    def neginf(j): return ['v_mov_b32 %s, 0xff800000' % v(T(j) + r) for r in range(16)]

    def fast(chk, jobs):
        kt = {}; vt = {}
        stream = []
        side = []
        marks = {}
        def S(ops, need=None):
            for i, x in enumerate(ops): stream.append((x, need if i == 0 else None))
        def mark(n): marks[n] = len(stream)
        def sd(name, after, mf, fn): side.append((name, after, mf, fn))
        def kl(u, j):
            def f(): kt[(u, j)] = kload_(u, j)
            return f
        def vl(u, j, slot):
            def f(): vt[(u, j)] = vload_(u, j, slot)
            return f
        def sm(u, j, c):
            def f():
                wait(lg=kt[(u, j)])
                mfma(v(T(j), 16), v(KF + 4 * j, 4), v(vAQ + 4 * u, 4), c)
            return f
        def pv(u, j, slot, half, breg, first=False):
            def f():
                if chk and j == 0: return
                wait(lg=vt[(u, j)])
                if chk and j < 8:
                    Lk = newlab('sk')
                    A.raw('    s_cmp_lt_u32 %s, %d' % (s(sT), 8 - j)); A.raw('    s_cbranch_scc1 %s' % Lk)
                mfma(v(OA, 16), v(VR + 8 * slot + 4 * half, 4), v(breg, 4), '0' if first else v(OA, 16))
                if chk and j < 8: A.raw(Lk + ':')
            return f
        def zero_if_invalid(j):
            def f():
                Lk = newlab('ok')
                A('s_cmp_ge_u32 %s, %d' % (s(sT), 8 - j)); A('s_cbranch_scc1 %s' % Lk)
                for d in range(8): A('v_mov_b32 %s, 0' % v(T(j) + d))
                A.label(Lk)
            return f
        NM = [108, 110]
        C = v(T(0), 16)
        def prol(u):
            S(merge(), need='s%d_8' % u)
            S(maxops(8, NM[u], 109, True) + maxfin(NM[u], 109))
            S(['v_mov_b32 %s, %s' % (v(T(0) + r), v(NM[u])) for r in range(16)])
            mark('c%d' % u)
        def tile(u, j):
            if j == 8:
                S(addm(8, NM[u])); S(exps(8) + cvts(8) + split())
            else:
                S(exps(j) + cvts(j), need='s%d_%d' % (u, j))
            mark('p%d_%d' % (u, j))
        mark('start')
        prol(0)
        for j in (8, 1, 2, 3): tile(0, j)
        prol(1)
        for j in (4, 5, 6, 7): tile(0, j)
        tile(1, 8)
        S(ofin(0, 2 if chk else 1), need='pv0_7'); mark('of0')
        for j in range(1, 8): tile(1, j)
        S(ofin(1, 2 if chk else 1), need='pv1_7')
        J = lambda after: sd('', after, False, job_)
        def job_():
            if jobs: jobs.pop(0)()
        for j in (0, 8): sd('', 'start', False, kl(0, j))
        sd('', 'start', True, sm(0, 0, '0')); sd('s0_8', 'start', True, sm(0, 8, '0'))
        for j in range(1, 8): sd('', 'start', False, kl(0, j))
        sd('', 'start', False, vl(0, 8, 0)); sd('', 'start', False, vl(0, 0, 1))
        for j in (0, 8): sd('', 'start', False, kl(1, j))
        J('start'); J('start')
        for j in range(1, 6):
            sd('s0_%d' % j, 'c0', True, sm(0, j, C)); sd('', 'c0', False, kl(1, j))
            if j & 1: J('c0')
        b8 = T(8)
        def pv8(u, after):
            sd('', after, True, pv(u, 8, 0, 0, b8, True)); sd('', after, True, pv(u, 8, 0, 1, b8 + 4)); sd('', after, False, vl(u, 1, 0))
            sd('', after, True, pv(u, 0, 1, 0, PF)); sd('', after, True, pv(u, 0, 1, 1, PF + 4)); sd('', after, False, vl(u, 2, 1))
        def pvj(u, j):
            slot = (j - 1) % 2; m = 'p%d_%d' % (u, j)
            sd('', m, True, pv(u, j, slot, 0, T(j))); J(m); sd('pv%d_%d' % (u, j), m, True, pv(u, j, slot, 1, T(j) + 4))
            if j + 2 <= 7: sd('', m, False, vl(u, j + 2, slot))
            elif u == 0: sd('', m, False, vl(1, 8 if slot == 0 else 0, slot))
            J(m)
        pv8(0, 'p0_8'); J('p0_8')
        pvj(0, 1)
        for j in (6, 7):
            sd('s0_%d' % j, 'c0', True, sm(0, j, C)); sd('', 'c0', False, kl(1, j))
        pvj(0, 2)
        sd('', 'p0_2', True, sm(1, 0, '0')); sd('s1_8', 'p0_2', True, sm(1, 8, '0')); J('p0_2')
        pvj(0, 3)
        for j in (1, 2): sd('s1_%d' % j, 'c1', True, sm(1, j, C))
        J('c1')
        pvj(0, 4)
        for j in (3, 4): sd('s1_%d' % j, 'c1', True, sm(1, j, C))
        for j in (5, 6, 7):
            pvj(0, j); sd('s1_%d' % j, 'c1', True, sm(1, j, C))
        pv8(1, 'of0'); J('of0')
        for j in range(1, 8): pvj(1, j)
        def cost(x): return 8 if (isinstance(x, str) and x.startswith(('v_exp', 'v_rcp'))) else 4
        def ispk(x): return isinstance(x, str) and x.startswith('v_pk')
        si = 0; since = 99; done = set()
        def emit_side():
            nonlocal si, since
            name, after, mf, fn = side[si]; fn(); done.add(name); si += 1
            since = 0 if mf else since + 4
        for i, (x, need_) in enumerate(stream):
            if need_:
                while need_ not in done:
                    assert marks[side[si][1]] <= i, (need_, side[si])
                    emit_side()
            n = 0
            while si < len(side) and marks[side[si][1]] <= i and n < 2:
                if side[si][2]:
                    if since < 28: break
                    c = 0; blk = False
                    for y, _ in stream[i:i + 12]:
                        if c >= 44: break
                        if ispk(y): blk = True; break
                        c += cost(y)
                    if blk: break
                emit_side(); n += 1
            if callable(x): x()
            else: A(x)
            since += cost(x)
        while si < len(side): emit_side()
        while jobs: jobs.pop(0)()

    Lchk = newlab('achk'); Lj = newlab('ajoin'); Lslow = newlab('aslow'); Ldone = newlab('adone')
    A('s_cmp_lt_u32 %s, 8' % s(sT))
    A('s_cbranch_scc1 %s' % Lchk)
    sv = (VM.n, VM.done, LG.n, LG.done)
    fast(False, list(jobs))
    A.label(Lj)
    A('s_cmp_lg_u64 %s, 0' % s(sBad, 2))
    A('s_cbranch_scc1 %s' % Lslow)
    A.label(Ldone)
    main_out, main_hist = A.out, A.hist
    ev = (VM.n, VM.done, LG.n, LG.done)
    A.out = OOL; A.hist = []
    A.label(Lchk)
    VM.n, VM.done, LG.n, LG.done = sv
    fast(True, list(jobs))
    A('s_branch %s' % Lj)
    A.label(Lslow)
    wait_all(vm=False)
    for u in range(2):
        for j in range(9): kload_(u, j)
        vload_(u, 8, 0); vload_(u, 0, 1)
        wait_all(vm=False)
        for j in range(9): mfma(v(T(j), 16), v(KF + 4 * j, 4), v(vAQ + 4 * u, 4), '0')
        Lv = newlab('valid')
        for j in range(8):
            A('s_cmp_ge_u32 %s, %d' % (s(sT), 8 - j)); A('s_cbranch_scc1 %s' % Lv)
            for x in neginf(j): A(x)
        A.label(Lv)
        for x in merge() + maxops(8, 108, 109, True): A(x)
        for j in range(1, 8):
            for x in maxops(j, 108, 109): A(x)
        for x in maxfin(108, 109): A(x)
        for j in range(1, 9):
            for x in addm(j, 108) + exps(j) + cvts(j): A(x)
        for x in split(): A(x)
        mfma(v(OA, 16), v(VR, 4), v(T(8), 4), '0'); mfma(v(OA, 16), v(VR + 4, 4), v(T(8) + 4, 4), v(OA, 16))
        mfma(v(OA, 16), v(VR + 8, 4), v(PF, 4), v(OA, 16)); mfma(v(OA, 16), v(VR + 12, 4), v(PF + 4, 4), v(OA, 16))
        for j in range(1, 8):
            A('s_nop 7')
            vload_(u, j, 0)
            wait_all(vm=False)
            mfma(v(OA, 16), v(VR, 4), v(T(j), 4), v(OA, 16)); mfma(v(OA, 16), v(VR + 4, 4), v(T(j) + 4, 4), v(OA, 16))
        for x in ofin(u, False):
            if callable(x): x()
            else: A(x)
    A('s_waitcnt vmcnt(0)')
    A('s_branch %s' % Ldone)
    A.out, A.hist = main_out, main_hist
    VM.n, VM.done, LG.n, LG.done = ev
    stamp('attn%d' % L)
    if L == 0: ckpt(2)
    wo_phase(L)

def wo_phase(L):
    typ = L & 1
    def unpack():
        for d in range(8):
            A('v_lshlrev_b32 %s, 16, %s' % (v(vAQ + 2 * d), v(vRES + d)))
            A('v_and_b32 %s, 0xffff0000, %s' % (v(vAQ + 2 * d + 1), v(vRES + d)))
    img_addr()
    if L > 0:
        for i in range(4): img_write(AWO[typ] + 4 * i, WOREG[typ], i)
    flag_g(sGF)
    for i in range(4 if L > 0 else 0, 8): img_write(AWO[typ] + 4 * i, WOREG[typ], i)
    if L == 0:
        F = vRES
        A('v_permlane32_swap_b32 %s, %s' % (v(F), v(F + 2))); A('v_permlane32_swap_b32 %s, %s' % (v(F + 1), v(F + 3)))
        A('v_permlane32_swap_b32 %s, %s' % (v(F + 4), v(F + 6))); A('v_permlane32_swap_b32 %s, %s' % (v(F + 5), v(F + 7)))
    unpack()
    wait_all(vm=False)
    barrier()
    ring = lambda ks: vT + 4 * (ks % 4)
    wt = {}
    for ks in range(3): wt[ks] = trfrag(ring(ks), WOREG[typ], ks)
    poll(vFlagG, SWS, sPh, 96)
    xt = {}
    for ks in range(4): xt[ks] = gload(ks, sOb)
    A('s_add_u32 %s, %s, 0x100' % (s(sPh), s(sPh)))
    stamp('opoll%d' % L)
    for ks in range(4, AHEAD): xt[ks] = gload(ks, sOb)
    nt = 1 - typ
    for ks in range(32):
        if ks + 3 < 32: wt[ks + 3] = trfrag(ring(ks + 3), WOREG[typ], ks + 3)
        if L < 3 and ks < 24:
            ii = (ks + 8) % 24
            tile, blk = divmod(ii, 8)
            img_write(AW[nt] + 4 * ii, WREG[nt][tile], blk)
        wait(vm=xt[ks], lg=wt[ks])
        mfma(v(vAQ, 16), v(ring(ks), 4), v(vX + 4 * ks, 4), v(vAQ, 16))
        if ks + AHEAD < 32: xt[ks + AHEAD] = gload(ks + AHEAD, sOb)
    pack(vAQ)
    stamp('wo%d' % L)
    if L == 3: return
    publish_x(vAQ, sOwn, sSt)
    flag_g(sGF)
    stamp('xpub%d' % L)
    if L < 2: ckpt(3 + 3 * L)

def layerB(L):
    wq, ring2, st = qkv(L)
    phi(vAK, 96)
    pack(vAK)
    for i in range(4): A('v_mov_b32 %s, %s' % (v(40 + i), s(sONE)))
    D1, D2 = 96, 112
    mfma(v(D1, 16), v(vAK, 4), v(vAV, 4), '0')
    mfma(v(D2, 16), v(vAK, 4), v(40, 4), '0')
    mfma(v(D1, 16), v(vAK + 4, 4), v(vAV + 4, 4), v(D1, 16))
    mfma(v(D2, 16), v(vAK + 4, 4), v(40, 4), v(D2, 16))
    A('s_add_u32 %s, %s, %d' % (s(sT0), s(sM0), R3b))
    A('v_add_u32 v56, %s, %s' % (s(sT0), v(vL16)))
    A('v_lshrrev_b32 v57, 4, %s' % v(vLane)); A('v_lshlrev_b32 v57, 5, v57')
    A('s_lshl_b32 %s, %s, 4' % (s(sT1), s(sW))); A('s_add_u32 %s, %s, %d' % (s(sT1), s(sT1), 2048 - 32))
    A('v_add_u32 v57, %s, v57' % s(sT1))
    A('v_add_u32 v58, %s, %s' % (s(sM0), v(vL16)))
    A('s_cmp_lt_u32 %s, 2' % s(sW))
    A('s_cselect_b64 vcc, -1, 0')
    A('v_cndmask_b32 v57, v57, v58, vcc')
    for j in range(8):
        A('v_cndmask_b32 %s, %s, %s, %s' % (v(32 + j), v(D1 + 8 + j), v(D1 + j), s(sHALF, 2)))
    for p in range(2):
        lds('ds_write_b128 %s, %s offset:%d' % (v(vKV), v(32 + 4 * p, 4), 32768 + p * 1024))
    for j in range(8):
        A('v_cndmask_b32 %s, %s, %s, %s' % (v(40 + j), v(D2 + j), v(D2 + 8 + j), s(sHALF, 2)))
    for p in range(2, 4):
        lds('ds_write_b128 %s, %s offset:%d' % (v(vKV), v(32 + 4 * p, 4), 32768 + p * 1024))
    A('s_lshl_b32 %s, %s, 16' % (s(sLkv), s(sC)))
    A('s_add_u32 %s, %s, 0x%x' % (s(sLkv), s(sLkv), LKV + (L >> 1) * 0x100000))
    A('s_lshl_b32 %s, %s, 12' % (s(sT0), s(sR))); A('s_add_u32 %s, %s, %s' % (s(sT0), s(sT0), s(sLkv)))
    wait_all(vm=False)
    barrier()
    for j in range(4):
        t = lds('ds_read_b128 %s, v56 offset:%d' % (v(96 + 4 * j, 4), j * 4096))
    wait(lg=t)
    A('v_pk_add_f32 v[96:97], v[96:97], v[100:101]'); A('v_pk_add_f32 v[98:99], v[98:99], v[102:103]')
    A('v_pk_add_f32 v[104:105], v[104:105], v[108:109]'); A('v_pk_add_f32 v[106:107], v[106:107], v[110:111]')
    A('v_pk_add_f32 v[96:97], v[96:97], v[104:105]'); A('v_pk_add_f32 v[98:99], v[98:99], v[106:107]')
    kvtok = vmem('buffer_store_dwordx4 v[96:99], v57, %s, %s offen sc0 sc1' % (s(SWS, 4), s(sT0)))
    A('s_mov_b32 %s, %d' % (s(sCPh), L + 1))
    stamp('kvpub%d' % L)
    fill = {}
    common_fill(fill, st)
    def flagK():
        A('s_lshl_b32 %s, %s, 2' % (s(sT0), s(sC))); A('s_add_u32 %s, %s, %s' % (s(sT0), s(sT0), s(sW)))
        A('s_lshl_b32 %s, %s, 7' % (s(sT0), s(sT0))); A('s_add_u32 %s, %s, 0x%x' % (s(sHalo0), s(sT0), KFLAG))
        A('s_lshl_b32 %s, %s, 2' % (s(sT0), s(sR))); A('s_add_u32 %s, %s, %s' % (s(sT0), s(sT0), s(sHalo0)))
        A('v_mov_b32 v100, %s' % s(sCPh))
        wait(vm=kvtok)
        A('s_mov_b64 exec, 1')
        vmem('buffer_store_dword v100, off, %s, %s sc0 sc1' % (s(SWS, 4), s(sT0)))
        A('s_mov_b64 exec, -1')
    fill.setdefault(20, []).append(flagK)
    pass2(1, wq, ring2, fill)
    wait(lg=st['csq'])
    ln_T(vAQ, vCSA, vRstd, vMr)
    phi(vAQ, 96)
    pack(vAQ)
    stamp('pass2_%d' % L)
    if STOP == 4 and L == 1: dbg_q(); ckpt(4)
    A('v_and_b32 v96, 15, %s' % v(vLane)); A('v_lshlrev_b32 v96, 2, v96')
    A('s_add_u32 %s, %s, %d' % (s(sT0), s(sM0), L_RED2))
    A('v_add_u32 v56, %s, %s' % (s(sT0), v(vL16)))
    A('v_add_u32 v58, %d, %s' % (L_RED2, v(vL16)))
    poll(96, SWS, sCPh, 97, soff=s(sHalo0))
    toks = []
    for j in range(16):
        A('s_add_u32 %s, %s, %d' % (s(sT0), s(sLkv), j * 4096))
        toks.append(vmem('buffer_load_dwordx4 %s, v57, %s, %s offen sc1' % (v(vX + 4 * j, 4), s(SWS, 4), s(sT0))))
    stamp('kvpoll%d' % L)
    for j in range(1, 16):
        wait(vm=toks[j])
        A('v_pk_add_f32 %s, %s, %s' % (v(vX, 2), v(vX, 2), v(vX + 4 * j, 2)))
        A('v_pk_add_f32 %s, %s, %s' % (v(vX + 2, 2), v(vX + 2, 2), v(vX + 4 * j + 2, 2)))
    lds('ds_write_b128 v56, %s' % v(vX, 4))
    wait_all(vm=False)
    barrier()
    for p in range(4):
        t = lds('ds_read_b128 %s, v58 offset:%d' % (v(32 + 4 * p, 4), p * 1024))
    wait(lg=t)
    for j in range(8):
        A('v_cndmask_b32 %s, %s, %s, %s' % (v(96 + j), v(40 + j), v(32 + j), s(sHALF, 2)))
    for d in range(4):
        A('v_cvt_pk_bf16_f32 %s, %s, %s' % (v(96 + d), v(96 + 2 * d), v(96 + 2 * d + 1)))
    for j in range(8):
        A('v_cndmask_b32 %s, %s, %s, %s' % (v(112 + j), v(32 + j), v(40 + j), s(sHALF, 2)))
    for d in range(4):
        A('v_cvt_pk_bf16_f32 %s, %s, %s' % (v(100 + d), v(112 + 2 * d), v(112 + 2 * d + 1)))
    mfma(v(32, 16), v(96, 4), v(vAQ, 4), '0')
    mfma(v(48, 16), v(100, 4), v(vAQ + 4, 4), '0')
    A('s_add_u32 %s, %s, 0x%x' % (s(sHalo0), s(sOwn), OBUF))
    A('v_add_f32 v64, 0x%08x, v40' % f2u(1e-6))
    A('v_add_f32 v66, 0x%08x, v48' % f2u(1e-6))
    A('v_rcp_f32 v64, v64'); A('v_rcp_f32 v66, v66')
    for p in range(4):
        A('v_pk_mul_f32 %s, %s, v[64:65] op_sel_hi:[1,0]' % (v(32 + 2 * p, 2), v(32 + 2 * p, 2)))
    for p in range(4):
        A('v_pk_mul_f32 %s, %s, v[66:67] op_sel_hi:[1,0]' % (v(56 + 2 * p, 2), v(56 + 2 * p, 2)))
    for d in range(4):
        A('v_cvt_pk_bf16_f32 %s, %s, %s' % (v(96 + d), v(32 + 2 * d), v(32 + 2 * d + 1)))
    for d in range(4):
        A('v_cvt_pk_bf16_f32 %s, %s, %s' % (v(100 + d), v(56 + 2 * d), v(56 + 2 * d + 1)))
    def sto(sc):
        vmem('buffer_store_dwordx4 v[96:99], %s, %s, %s offen%s' % (v(vL16), s(SWS, 4), s(sHalo0), sc))
        vmem('buffer_store_dwordx4 v[100:103], %s, %s, %s offen offset:1024%s' % (v(vL16), s(SWS, 4), s(sHalo0), sc))
    dual(sto)
    stamp('apply%d' % L)
    if L == 1: ckpt(5)
    wo_phase(L)

def final():
    F = vAQ
    A('v_and_b32 v64, 31, %s' % v(vLane)); A('v_lshlrev_b32 v64, 10, v64')
    A('v_lshrrev_b32 v65, 5, %s' % v(vLane)); A('v_lshl_add_u32 v64, v65, 4, v64')
    A('s_lshl_b32 %s, %s, 6' % (s(sT0), s(sC))); A('s_add_u32 %s, %s, %s' % (s(sT0), s(sT0), s(sXb)))
    A('v_permlane32_swap_b32 %s, %s' % (v(F), v(F + 2))); A('v_permlane32_swap_b32 %s, %s' % (v(F + 1), v(F + 3)))
    A('v_permlane32_swap_b32 %s, %s' % (v(F + 4), v(F + 6))); A('v_permlane32_swap_b32 %s, %s' % (v(F + 5), v(F + 7)))
    A('buffer_store_dwordx4 %s, v64, %s, %s offen' % (v(F, 4), s(SOUT, 4), s(sT0)))
    A('buffer_store_dwordx4 %s, v64, %s, %s offen offset:32' % (v(F + 4, 4), s(SOUT, 4), s(sT0)))
    if STAMPS:
        A('s_waitcnt vmcnt(0)')
        stamp('end')
        A('s_memrealtime %s' % s(sST, 2)); A('s_waitcnt lgkmcnt(0)')
        A('v_mov_b32 v95, %s' % s(sST))
        A('ds_write_b32 v93, v95 offset:252')
        A('v_lshl_add_u32 v93, %s, 2, v93' % v(vLane))
        A('ds_read_b32 v95, v93')
        A('s_lshl_b32 s23, s2, 2'); A('s_add_u32 s23, s23, %s' % s(sW))
        A('s_lshl_b32 s23, s23, 9'); A('s_add_u32 s23, s23, 0x%x' % DBGBUF)
        A('v_lshlrev_b32 v93, 2, %s' % v(vLane))
        A('s_waitcnt lgkmcnt(0)')
        A('buffer_store_dword v95, v93, %s, s23 offen' % s(SWS, 4))
    A.label('L_end')
    A('s_endpgm')
    A.out += OOL
    A.raw('L_codeend:')

def main():
    prologue()
    layerA(0); layerB(1); layerA(2); layerB(3)
    final()
    hdr = open('interleave_layers__sliding_block__linear_attn_block__prompt.s.ref').read().split('\n')
    head = [l for l in hdr if l.startswith(';') and '@launch' not in l]
    txt = '\n'.join(head) + '\n; @launch grid=(256,1,1) block=(256,1,1) lds=%d\n' % LDS_BYTES
    txt += '.amdgcn_target "amdgcn-amd-amdhsa--gfx950"\n.text\n.globl %s\n.p2align 8\n.type %s,@function\n%s:\n' % (NAME, NAME, NAME)
    txt += A.text()
    txt += '''.section .rodata,"a"
.p2align 6
.amdhsa_kernel %s
  .amdhsa_next_free_vgpr 512
  .amdhsa_next_free_sgpr 102
  .amdhsa_accum_offset 256
  .amdhsa_group_segment_fixed_size 0
  .amdhsa_kernarg_size 72
  .amdhsa_user_sgpr_count 2
  .amdhsa_user_sgpr_kernarg_segment_ptr 1
  .amdhsa_system_sgpr_workgroup_id_x 1
.end_amdhsa_kernel
''' % NAME
    out = [x for x in sys.argv[1:] if not x.startswith('--')][0]
    open(out, 'w').write(txt)
    if STAMPS: open(out + '.stamps', 'w').write('\n'.join(stamp_names))
    print('wrote', out, 'lines', len(A.out), 'nop states', A.nops)
main()
```

```python
import sys, math, struct
from asmlib import *

NAME = 'interleave_layers__sliding_block__linear_attn_block__prompt_kernel'
STAMPS = '--stamps' in sys.argv
def optval(name, default):
    for x in sys.argv:
        if x.startswith('--%s=' % name): return int(x.split('=')[1], 0)
    return default
STOP = optval('stop', 99)
FORCE_SLOW = optval('slow', 0)
FORCE_FB = optval('fb', 0)
AHEAD = optval('ahead', 8)
JOB0 = optval('job0', 60); JOBP = optval('jobp', 135)
SPIN = 200000
def f2u(x): return struct.unpack('<I', struct.pack('<f', x))[0]

XBUF, OBUF, XSTAT = 0x000000, 0x200000, 0x400000
GFLAG, KFLAG, HFLAG, RFLAG = 0x440000, 0x442000, 0x444000, 0x44C000
NZ = 49
LKV = 0x500000
KVBUF = 0x800000
RT = 0xC00000
DBGBUF = 0x1000000
WS_BYTES = 0x2000000
OOB = 0x7f000000
R1, R2, R3a, R0, R3b, L_MISC = 0, 32768, 65536, 98304, 131072, 147456
L_KV = R0
L_ROW = L_MISC; L_CS = L_MISC + 1024; L_CSP = L_MISC + 2048; L_RED2 = L_MISC + 6144
LDS_BYTES = 163840
REG = [dict(q=R3a, k=R1, v=R2, o=R1)] + [dict(q=R0, k=R3a, v=R2, o=R1)] * 3
FRG = [dict(q=0, k=0, v=0, o=0), dict(q=0, k=1, v=1, o=0), dict(q=1, k=1, v=1, o=1), dict(q=1, k=1, v=1, o=1)]
WREG = [{0: R3a, 1: R1, 2: R2}]
AW = [0, 96]; AWO = [192, 224]
SX, SWQA, SWQB, SWOA, SWOB, SOUT, SWS, SDBG = 24, 28, 32, 36, 40, 44, 48, 52
sR, sC, sW, sT, sXb, sOwn, sOo, sFast = 56, 57, 58, 59, 60, 61, 62, 63
sMASK = 64; sHALF = 96
sGF, sSpin, sOb, sSt = 98, 99, 100, 101
sT0, sT1, sXcc, sVal, sDma, sM0, sT2, sT3, sUP = 4, 5, 6, 7, 8, 9, 10, 11, 12
sLkv = 16; sBad = 16
sRb = [0, 1, 14, 15]
sST = 18; sHalo0, sHalo1 = 20, 21; sONE = 22; sG = 3
sRT = SWQB
QS = f2u(0.25 * math.log2(math.e)); EPS = f2u(1e-5); ONE = '0x3f803f80'
vLane, vL16, vW0, vW2, vDmaW, vRec, vStatSt, vKV = 0, 1, 2, 3, 4, 5, 6, 7
vRES = 8
vL16h = vDmaW
vAQ, vAK, vAV = 16, 32, 48
vT = 64; vX = 128; vCSA = 112; vRSB = 96
MRB = [16]
vRstd, vMr, vCsV, vCsK = 88, 90, 92, 94

A = Asm()
OOL = []

class Ctr:
    def __init__(self, cap): self.n = 0; self.done = 0; self.cap = cap
    def issue(self): self.n += 1; return self.n
    def need(self, tok):
        if tok is None or tok <= self.done: return None
        self.done = tok
        return min(self.n - tok, self.cap)
    def reset(self): self.done = self.n
VM, LG = Ctr(63), Ctr(15)
def wait(vm=None, lg=None):
    x = VM.need(vm); y = LG.need(lg)
    parts = []
    if x is not None: parts.append('vmcnt(%d)' % x)
    if y is not None: parts.append('lgkmcnt(%d)' % y)
    if parts: A('s_waitcnt ' + ' '.join(parts))
def wait_all(vm=True, lg=True):
    parts = []
    if vm: parts.append('vmcnt(0)'); VM.reset()
    if lg: parts.append('lgkmcnt(0)'); LG.reset()
    A('s_waitcnt ' + ' '.join(parts))
def vmem(t): A(t); return VM.issue()
def lds(t): A(t); return LG.issue()
def barrier(): A('s_barrier')
def run(ops):
    for x in ops:
        if callable(x): x()
        else: A(x)
_lab = [0]
def newlab(p='L'):
    _lab[0] += 1
    return '%s_%d' % (p, _lab[0])
class ool:
    def __enter__(self):
        self.sv = (A.out, A.hist, VM.n, VM.done, LG.n, LG.done)
        A.out = OOL; A.hist = []
    def __exit__(self, *a):
        A.out, A.hist, VM.n, VM.done, LG.n, LG.done = self.sv

stamp_names = []
def stamp(name):
    if not STAMPS: return
    idx = len(stamp_names); stamp_names.append(name)
    A('s_memtime %s' % s(sST, 2))
    A('s_waitcnt lgkmcnt(0)'); LG.reset()
    A('v_mov_b32 v95, %s' % s(sST)); A('v_mov_b32 v93, s23')
    lds('ds_write_b32 v93, v95 offset:%d' % (4 * idx))
def sstamp(k):
    if not STAMPS: return
    A('s_memtime %s' % s(36 + 2 * k, 2)); A('s_waitcnt lgkmcnt(0)'); LG.reset()
def sflush(names):
    if not STAMPS: return
    for k, n in enumerate(names):
        idx = len(stamp_names); stamp_names.append(n)
        A('v_mov_b32 v95, %s' % s(36 + 2 * k)); A('v_mov_b32 v93, s23')
        lds('ds_write_b32 v93, v95 offset:%d' % (4 * idx))
def ckpt(n):
    if STOP == n:
        A('s_waitcnt vmcnt(0) lgkmcnt(0)'); A('s_branch L_end')
def mfma(d, x, y, c): A('v_mfma_f32_32x32x16_bf16 %s, %s, %s, %s' % (d, x, y, c))
def srd(dst, lo, nbytes):
    A('s_mov_b32 %s, %s' % (s(dst), s(lo)))
    A('s_and_b32 %s, %s, 0xffff' % (s(dst + 1), s(lo + 1)))
    A('s_mov_b32 %s, 0x%x' % (s(dst + 2), nbytes))
    A('s_mov_b32 %s, 0x00020000' % s(dst + 3))
def spin_tail(L):
    A('s_sub_u32 %s, %s, 1' % (s(sSpin), s(sSpin)))
    A('s_cmp_lg_u32 %s, 0' % s(sSpin))
    A('s_cbranch_scc1 %s' % L)
def poll(voff, srdr, val, vdst, soff='0', cmpv=None):
    L = newlab('poll'); D = newlab('polld')
    A('s_mov_b32 %s, %d' % (s(sSpin), SPIN))
    A.label(L)
    A('buffer_load_dword %s, %s, %s, %s offen sc1' % (v(vdst), v(voff), s(srdr, 4), soff))
    A('s_waitcnt vmcnt(0)')
    A('v_cmp_le_u32 vcc, %s, %s' % (val if cmpv is None else v(cmpv), v(vdst)))
    A('s_cmp_eq_u64 vcc, exec')
    A('s_cbranch_scc1 %s' % D)
    spin_tail(L)
    A.label(D)
    VM.reset()
def dual(fn):
    F = newlab('fast'); E = newlab('dend')
    n0 = VM.n; d0 = VM.done
    A('s_cmp_lg_u32 %s, 0' % s(sFast))
    A('s_cbranch_scc0 %s' % F)
    fn('')
    A.label(E)
    with ool():
        A.label(F); VM.n = n0; VM.done = d0
        fn(' sc0 sc1')
        A('s_branch %s' % E)
def flag_store(soff, val, sc=' sc0 sc1', vtmp=93):
    A('v_mov_b32 %s, %s' % (v(vtmp), val))
    A('s_mov_b64 exec, 1')
    t = vmem('buffer_store_dword %s, off, %s, %s%s' % (v(vtmp), s(SWS, 4), s(soff), sc))
    A('s_mov_b64 exec, -1')
    return t
def settag(r, tag):
    A('v_or_b32 %s, 1, %s' % (v(r), v(r)) if tag else 'v_and_b32 %s, -2, %s' % (v(r), v(r)))
def tagbad(tmp, regs, tag):
    regs = list(regs)
    op = 0x80 if tag else 0xfe
    cur = regs[0]; rest = regs[1:]
    while len(rest) > 1:
        A('v_bitop3_b32 %s, %s, %s, %s bitop3:0x%x' % (v(tmp), v(cur), v(rest[0]), v(rest[1]), op))
        cur = tmp; rest = rest[2:]
    b = rest[0] if rest else cur
    A('v_bitop3_b32 %s, %s, %s, 1 bitop3:0x%x' % (v(tmp), v(cur), v(b), 0x80 if tag else 0x02))
    A('v_cmp_eq_u32 vcc, 0, %s' % v(tmp))

def gload(ks, base_s, force=False):
    if ks % 4 == 0 or force:
        A('s_add_u32 %s, %s, %d' % (s(sG), s(base_s), (ks & ~3) * 1024))
    return vmem('buffer_load_dwordx4 %s, %s, %s, %s offen offset:%d sc1' % (v(vX + 4 * ks, 4), v(vL16), s(SWS, 4), s(sG), (ks % 4) * 1024))
def gcheck(ks, issued, base_s, tag, tmp):
    St = newlab('gst'); Bk = newlab('gbk')
    tagbad(tmp, [vX + 4 * ks, vX + 4 * ks + 4], tag)
    A.raw('    s_cbranch_vccnz %s' % St)
    A.raw(Bk + ':')
    with ool():
        A.label(St)
        A('s_mov_b32 %s, %d' % (s(sSpin), SPIN))
        Lp = newlab('glp'); A.label(Lp)
        for k in range(ks, issued): gload(k, base_s, force=(k == ks))
        A('s_waitcnt vmcnt(0)')
        tagbad(tmp, [vX + 4 * ks, vX + 4 * ks + 4], tag)
        A('s_cbranch_vccz %s' % Bk)
        spin_tail(Lp)
        A('s_branch %s' % Bk)

TR2 = [512]
def trread(dst, base, off):
    lds('ds_read_b64_tr_b16 %s, %s offset:%d' % (v(dst, 2), v(base), off))
    return lds('ds_read_b64_tr_b16 %s, %s offset:%d' % (v(dst + 2, 2), v(base), off + TR2[0]))
def trfrag(dst, region, ks):
    base, off = (vW0, region) if region < 65536 else (vW2, region - 65536)
    return trread(dst, base, off + ks * 1024)
def wfrag(dst, L, key, ks):
    reg = REG[L][key]
    if not FRG[L][key]: return trfrag(dst, reg, ks)
    base = vL16 if reg < 65536 else vL16h
    return lds('ds_read_b128 %s, %s offset:%d' % (v(dst, 4), v(base), (reg & 0xffff) + ks * 1024))
def slice_addr(vi, tr=False):
    A('s_lshl_b32 %s, %s, 13' % (s(sT3), s(sW)))
    A('v_add_u32 %s, %s, %s' % (v(vi), s(sT3), v(vW0 if tr else vL16)))
    A('v_add_u32 %s, 0x10000, %s' % (v(vi + 1), v(vi)))
def sl_write(vi, src, region, i):
    return lds('ds_write_b128 %s, %s offset:%d' % (v(vi + (region >> 16)), src, (region & 0xffff) + i * 1024))
def sl_read(vi, dst, region, i):
    return lds('ds_read_b128 %s, %s offset:%d' % (dst, v(vi + (region >> 16)), (region & 0xffff) + i * 1024))
def sl_trsave(vi, areg, region, i):
    off = (region & 0xffff) + i * 1024
    lds('ds_read_b64_tr_b16 %s, %s offset:%d' % (a(areg, 2), v(vi + (region >> 16)), off))
    return lds('ds_read_b64_tr_b16 %s, %s offset:%d' % (a(areg + 2, 2), v(vi + (region >> 16)), off + 512))
def img_op1(write, vtmp, areg, region, i):
    A('s_lshl_b32 %s, %s, 12' % (s(sT3), s(sRb[i & 3]))); A('s_add_u32 %s, %s, %s' % (s(sT3), s(sT3), s(sM0)))
    if region >= 65536: A('s_add_u32 %s, %s, 0x10000' % (s(sT3), s(sT3)))
    A('v_add_u32 %s, %s, %s' % (v(vtmp), s(sT3), v(vL16)))
    off = (region & 0xffff) + (i >> 2) * 16384
    return lds('ds_write_b128 %s, %s offset:%d' % (v(vtmp), a(areg, 4), off))
sRL = [33, 34]; sRG = [35, 32]
def rt_dma(t5, region, i):
    if i % 4 == 0:
        A('s_add_u32 %s, %s, %d' % (s(sT2), s(sRG[i >> 2]), t5 * 32768))
        A('s_add_u32 m0, %s, %d' % (s(sRL[i >> 2]), region))
    return vmem('buffer_load_dwordx4 %s, %s, %s offen offset:%d sc1 lds' % (v(vL16), s(SWS, 4), s(sT2), (i & 3) * 1024))

def padd(d, x, y):
    A('v_add_f32 %s, %s, %s' % (v(d), v(x), v(y))); A('v_add_f32 %s, %s, %s' % (v(d + 1), v(x + 1), v(y + 1)))
def ln_T(acc, cs, rs, mr):
    for p in range(8):
        A('v_pk_mul_f32 %s, %s, %s op_sel_hi:[1,0]' % (v(acc + 2 * p, 2), v(acc + 2 * p, 2), v(rs, 2)))
    for p in range(8):
        A('v_pk_fma_f32 %s, %s, %s, %s op_sel_hi:[1,0,1] neg_lo:[0,1,0] neg_hi:[0,1,0]' % (v(acc + 2 * p, 2), v(cs + 2 * p, 2), v(mr, 2), v(acc + 2 * p, 2)))
def ln_N(acc, csn):
    for p in range(8):
        A('v_pk_mul_f32 %s, %s, %s' % (v(acc + 2 * p, 2), v(acc + 2 * p, 2), v(vRSB + 2 * p, 2)))
    for p in range(8):
        A('v_pk_fma_f32 %s, %s, %s, %s op_sel_hi:[1,0,1] neg_lo:[0,1,0] neg_hi:[0,1,0]' % (v(acc + 2 * p, 2), v(MRB[0] + 2 * p, 2), v(csn, 2), v(acc + 2 * p, 2)))
def pack(acc, dst=None):
    dst = acc if dst is None else dst
    for d in range(8):
        A('v_cvt_pk_bf16_f32 %s, %s, %s' % (v(dst + d), v(acc + 2 * d), v(acc + 2 * d + 1)))
def phi(acc, tmp):
    A('s_mov_b32 %s, 0x%08x' % (s(sT0), f2u(math.log2(math.e)))); A('s_mov_b32 %s, %s' % (s(sT1), s(sT0)))
    A('s_mov_b32 %s, 0x%08x' % (s(sT2), f2u(1e-6))); A('s_mov_b32 %s, %s' % (s(sT3), s(sT2)))
    for p in range(8):
        A('v_pk_mul_f32 %s, %s, %s' % (v(tmp + 2 * p, 2), v(acc + 2 * p, 2), s(sT0, 2)))
    for r in range(16):
        A('v_exp_f32_e64 %s, %s clamp' % (v(tmp + r), v(tmp + r)))
        A('v_max_f32 %s, 0, %s' % (v(acc + r), v(acc + r)))
    for p in range(8):
        A('v_pk_add_f32 %s, %s, %s' % (v(acc + 2 * p, 2), v(acc + 2 * p, 2), v(tmp + 2 * p, 2)))
    for p in range(8):
        A('v_pk_add_f32 %s, %s, %s' % (v(acc + 2 * p, 2), v(acc + 2 * p, 2), s(sT2, 2)))

def csp_addr(d, t):
    A('v_and_b32 %s, 31, %s' % (v(t), v(vLane))); A('v_lshlrev_b32 %s, 5, %s' % (v(t), v(t)))
    A('v_lshrrev_b32 %s, 5, %s' % (v(d), v(vLane))); A('v_lshl_add_u32 %s, %s, 2, %s' % (v(d), v(d), v(t)))
    A('s_lshl_b32 %s, %s, 3' % (s(sT0), s(sW))); A('s_add_u32 %s, %s, 0x%x' % (s(sT0), s(sT0), L_CSP))
    A('v_add_u32 %s, %s, %s' % (v(d), s(sT0), v(d)))

def stats_fns(typ, st, csb):
    F = {}
    def fA():
        for j in range(3): padd(96 + 4 * j, 96 + 4 * j, 98 + 4 * j)
    def fB(): padd(108, 108, 110); padd(96, 96, 100); padd(104, 104, 108)
    def fB2():
        padd(96, 96, 104); A('v_mov_b32 v98, v96'); A('v_mov_b32 v99, v97')
    def fC():
        A('v_permlane32_swap_b32 v98, v96'); A('v_permlane32_swap_b32 v99, v97')
        padd(96, 96, 98)
        A('v_mul_f32 v96, 0x%08x, v96' % f2u(1 / 512)); A('v_mul_f32 v97, 0x%08x, v97' % f2u(1 / 512))
    def fD():
        A('v_fma_f32 v97, -v96, v96, v97'); A('v_max_f32 v97, 0, v97')
        A('v_add_f32 v97, 0x%08x, v97' % EPS); A('v_rsq_f32 %s, v97' % v(vRstd))
    def fE():
        A('v_mul_f32 %s, v96, %s' % (v(vMr), v(vRstd)))
        A('s_lshl_b32 %s, %s, 8' % (s(sT1), s(sW))); A('s_add_u32 %s, %s, %d' % (s(sT1), s(sT1), L_ROW))
        A('v_lshl_add_u32 v98, %s, 2, %s' % (v(vLane), s(sT1)))
        A('v_cndmask_b32 v99, %s, %s, %s' % (v(vRstd), v(vMr), s(sUP, 2)))
    def fF():
        lds('ds_write_b32 v98, v99')
        A('v_lshrrev_b32 v89, 5, %s' % v(vLane)); A('v_lshlrev_b32 v91, 4, v89')
        A('v_add_u32 v89, %s, v91' % s(sT1))
        A('v_add_u32 v91, 0x%x, v91' % (L_CS + typ * 384))
    def fG(i):
        def f():
            lds('ds_read_b128 %s, v89 offset:%d' % (v(vRSB + 4 * i, 4), i * 32))
            st['bc'] = lds('ds_read_b128 %s, v89 offset:%d' % (v(MRB[0] + 4 * i, 4), 128 + i * 32))
        return f
    def fH():
        A('v_and_b32 v93, 31, %s' % v(vLane)); A('v_lshlrev_b32 v93, 2, v93')
        A('v_add_u32 v93, 0x%x, v93' % (L_CS + typ * 384))
        st['bc'] = lds('ds_read_b32 %s, v93 offset:256' % v(vCsV))
        if typ == 1: st['bc'] = lds('ds_read_b32 %s, v93 offset:128' % v(vCsK))
    def fI(i, tile, key, dst=vCSA):
        def f(): st[key] = lds('ds_read_b128 %s, v91 offset:%d' % (v(dst + 4 * i, 4), tile * 128 + i * 32))
        return f
    def c2a():
        A('v_and_b32 v92, 31, %s' % v(vLane)); A('v_lshlrev_b32 v93, 5, v92')
        A('v_add_u32 v93, 0x%x, v93' % L_CSP)
        A('v_lshlrev_b32 v92, 2, v92'); A('v_add_u32 v92, 0x%x, v92' % (L_CS + typ * 384))
    def c2b(t):
        def f():
            lds('ds_read_b128 %s, v93 offset:%d' % (v(csb[t], 4), t * 1024))
            st['cs%d' % t] = lds('ds_read_b128 %s, v93 offset:%d' % (v(csb[t] + 4, 4), t * 1024 + 16))
        return f
    def c2c(t):
        def f():
            b = csb[t]
            wait(lg=st['cs%d' % t])
            padd(b, b, b + 2); padd(b + 4, b + 4, b + 6)
        return f
    def c2d(t):
        def f():
            b = csb[t]
            padd(b, b, b + 4)
            A('v_add_f32 %s, %s, %s' % (v(b), v(b), v(b + 1)))
            lds('ds_write_b32 v92, %s offset:%d' % (v(b), t * 128))
        return f
    return dict(A=fA, B=fB, B2=fB2, C=fC, D=fD, E=fE, F=fF, G=fG, H=fH, I=fI, c2a=c2a, c2b=c2b, c2c=c2c, c2d=c2d)

def wbase(alt):
    A('v_lshrrev_b32 v64, 5, %s' % v(vLane)); A('v_lshlrev_b32 %s, %d, v64' % (v(vW0), 9 if alt else 8))
    A('v_bfe_u32 v65, %s, 2, 2' % v(vLane)); A('v_lshl_add_u32 %s, v65, 6, %s' % (v(vW0), v(vW0)))
    A('v_bfe_u32 v65, %s, 4, 1' % v(vLane)); A('v_lshl_add_u32 %s, v65, 5, %s' % (v(vW0), v(vW0)))
    A('v_and_b32 v65, 3, %s' % v(vLane)); A('v_lshl_add_u32 %s, v65, 3, %s' % (v(vW0), v(vW0)))
    A('v_add_u32 %s, 0x10000, %s' % (v(vW2), v(vW0)))

def prologue():
    A.raw('; generated by gen/gen6.py')
    A('s_cmp_ge_u32 s2, 256')
    A('s_cbranch_scc1 L_end')
    A('s_load_dwordx16 s[4:19], s[0:1], 0')
    A('s_load_dwordx2 s[20:21], s[0:1], 64')
    if STAMPS: A('s_memtime s[100:101]'); A('s_memrealtime s[98:99]')
    A('v_lshrrev_b32 v1, 6, v0')
    A('v_and_b32 %s, 63, v0' % v(vLane))
    A('v_readfirstlane_b32 %s, v1' % s(sW))
    A('s_and_b32 s3, s2, 7')
    A('s_lshr_b32 %s, s2, 3' % s(sC))
    A('s_lshr_b32 %s, %s, 4' % (s(sR), s(sC)))
    A('s_lshl_b32 s3, s3, 1')
    A('s_add_u32 %s, %s, s3' % (s(sR), s(sR)))
    A('s_and_b32 %s, %s, 15' % (s(sC), s(sC)))
    A('s_lshl_b32 %s, %s, 2' % (s(sT), s(sR)))
    A('s_add_u32 %s, %s, %s' % (s(sT), s(sT), s(sW)))
    A('v_lshlrev_b32 %s, 4, %s' % (v(vL16), v(vLane)))
    A('v_lshrrev_b32 v64, 2, %s' % v(vLane)); A('v_and_b32 v65, 3, %s' % v(vLane)); A('v_lshlrev_b32 v65, 4, v65')
    A('s_lshl_b32 s3, %s, 6' % s(sC)); A('v_add_u32 v65, s3, v65')
    A('v_mul_u32_u24 %s, 3072, v64' % v(vDmaW)); A('v_add_u32 %s, %s, v65' % (v(vDmaW), v(vDmaW)))
    A('s_lshl_b32 %s, %s, 15' % (s(sXb), s(sT)))
    A('s_lshl_b32 %s, %s, 11' % (s(sOwn), s(sC))); A('s_add_u32 %s, %s, %s' % (s(sOwn), s(sOwn), s(sXb)))
    A('v_lshrrev_b32 v64, 5, %s' % v(vLane)); A('v_and_b32 v65, 31, %s' % v(vLane))
    A('v_xor_b32 v66, v64, v65'); A('v_lshlrev_b32 v66, 4, v66'); A('v_lshl_add_u32 v24, v64, 10, v66')
    for i in range(1, 8): A('v_xor_b32 %s, %d, v24' % (v(24 + i), i << 5))
    A('v_and_b32 v66, 15, v65'); A('v_xor_b32 v66, v64, v66'); A('v_lshlrev_b32 v66, 4, v66')
    A('v_lshl_add_u32 v16, v65, 9, v66')
    A('s_lshl_b32 s22, %s, 14' % s(sW)); A('s_add_u32 s22, s22, %d' % R3a)
    A('v_add_u32 v16, s22, v16')
    for i in range(1, 8): A('v_xor_b32 %s, %d, v16' % (v(16 + i), i << 5))
    A('v_lshlrev_b32 v67, 7, %s' % v(vLane))
    A('v_lshrrev_b32 v64, 3, %s' % v(vLane)); A('v_and_b32 v65, 3, %s' % v(vLane)); A('v_lshlrev_b32 v65, 4, v65')
    A('v_lshl_add_u32 v65, v64, 6, v65'); A('v_bfe_u32 v66, %s, 2, 1' % v(vLane))
    A('v_lshl_add_u32 v49, v66, 10, v65'); A('v_mul_u32_u24 v66, 3072, v66'); A('v_add_u32 v48, v66, v65')
    A('v_mul_u32_u24 v90, 163840, v64'); A('v_and_b32 v65, 7, %s' % v(vLane)); A('v_lshl_add_u32 v90, v65, 4, v90')
    for i in range(4): A('v_accvgpr_write_b32 a%d, 0' % (112 + i))
    A('s_waitcnt lgkmcnt(0)')
    srd(SX, 4, 0x200000); srd(SWQA, 6, 0x180000); srd(SWS, 20, WS_BYTES)
    srd(SWOA, 8, 0x80000); srd(SWQB, 12, 0x180000); srd(SWOB, 14, 0x80000)
    srd(SOUT, 16, 0x200000); srd(SDBG, 18, 256)
    if STAMPS:
        A('s_lshl_b32 s23, %s, 9' % s(sW)); A('s_add_u32 s23, s23, %d' % (L_MISC + 12288))
        stamp_names.append('start')
        A('v_mov_b32 v95, s100'); A('v_mov_b32 v93, s23'); A('ds_write_b32 v93, v95')
        A('v_mov_b32 v95, s98'); A('ds_write_b32 v93, v95 offset:248')
    stamp('kernarg')
    L1, L2, L3, Lj = newlab('t'), newlab('t'), newlab('t'), newlab('tj')
    A('s_cmp_eq_u32 %s, 3' % s(sW)); A('s_cbranch_scc1 %s' % L3)
    A('s_cmp_eq_u32 %s, 1' % s(sW)); A('s_cbranch_scc1 %s' % L1)
    A('s_cmp_eq_u32 %s, 2' % s(sW)); A('s_cbranch_scc1 %s' % L2)
    A('s_mul_i32 %s, s2, 6144' % s(sT0))
    A('s_mov_b32 exec_hi, 0xffff')
    A('buffer_load_dword a255, v67, %s, %s offen' % (s(SWQA, 4), s(sT0)))
    A('s_mov_b64 exec, -1')
    A('s_branch %s' % L2)
    A.label(L1)
    A('s_lshl_b32 %s, %s, 17' % (s(sT0), s(sR))); A('s_lshl_b32 %s, %s, 13' % (s(sT1), s(sC))); A('s_add_u32 %s, %s, %s' % (s(sT0), s(sT0), s(sT1)))
    A('buffer_load_dword a255, v67, %s, %s offen' % (s(SX, 4), s(sT0)))
    A.label(L2)
    A('s_mul_i32 %s, s2, 6144' % s(sT0)); A('s_lshl_b32 %s, %s, 10' % (s(sT1), s(sW))); A('s_add_u32 %s, %s, %s' % (s(sT0), s(sT0), s(sT1)))
    A('buffer_load_dwordx4 a[96:99], v48, %s, %s offen' % (s(SWQB, 4), s(sT0)))
    A('buffer_load_dwordx4 a[100:103], v48, %s, %s offen offset:512' % (s(SWQB, 4), s(sT0)))
    A('s_branch %s' % Lj)
    A.label(L3)
    A('s_lshl_b32 %s, s2, 11' % s(sT0))
    A('buffer_load_dwordx4 a[96:99], v49, %s, %s offen' % (s(SWOB, 4), s(sT0)))
    A('buffer_load_dwordx4 a[100:103], v49, %s, %s offen offset:512' % (s(SWOB, 4), s(sT0)))
    A('buffer_load_dwordx4 a[104:107], v49, %s, %s offen' % (s(SWOA, 4), s(sT0)))
    A('buffer_load_dwordx4 a[108:111], v49, %s, %s offen offset:512' % (s(SWOA, 4), s(sT0)))
    A('s_getpc_b64 s[10:11]')
    A.raw('L_pc:')
    A('s_lshr_b32 %s, s2, 3' % s(sT0))
    A('v_lshlrev_b32 v64, 5, %s' % v(vLane)); A('v_add_u32 v64, %s, v64' % s(sT0)); A('v_lshlrev_b32 v64, 7, v64')
    A.raw('    v_cmp_gt_u32 vcc, L_codeend-L_pc-4, v64')
    A('s_nop 4')
    A('s_and_b64 exec, exec, vcc')
    A('global_load_dword a255, v64, s[10:11]')
    A('s_mov_b64 exec, -1')
    A('s_lshl_b32 %s, s2, 10' % s(sT1)); A('s_add_u32 %s, %s, 0x%x' % (s(sT1), s(sT1), GFLAG))
    A('s_cmp_lt_u32 s2, %d' % NZ); A('s_cselect_b32 %s, %s, 0x%x' % (s(sT1), s(sT1), OOB))
    A('buffer_store_dwordx4 a[112:115], %s, %s, %s offen sc0 sc1' % (v(vL16), s(SWS, 4), s(sT1)))
    A.label(Lj)

def xdma(i, half):
    A('s_add_u32 %s, %s, %d' % (s(sT2), s(sXb), i * 2048 + half * 512))
    A('s_add_u32 m0, s22, %d' % (i * 1024))
    return vmem('buffer_load_dwordx4 %s, %s, %s offen lds' % (v(24 + (i & 7)), s(SX, 4), s(sT2)))
def w_soff(tile, half, b):
    A('s_mul_i32 %s, %s, %d' % (s(sT2), s(sRb[b]), 4 * 49152))
    A('s_add_u32 %s, %s, %s' % (s(sT2), s(sT2), s(sDma)))
    A('s_add_u32 %s, %s, %d' % (s(sT2), s(sT2), half * 16 * 49152 + tile * 1024))
def wdma(tile, half, b):
    w_soff(tile, half, b)
    A('s_lshl_b32 %s, %s, 12' % (s(sT3), s(sRb[b]))); A('s_add_u32 %s, %s, %s' % (s(sT3), s(sT3), s(sM0)))
    A('s_add_u32 m0, %s, %d' % (s(sT3), WREG[0][tile] + half * 16384))
    return vmem('buffer_load_dwordx4 %s, %s, %s offen lds' % (v(vDmaW), s(SWQA, 4), s(sT2)))

def consts2():
    A('s_mov_b32 %s, 0' % s(sFast))
    A('s_getreg_b32 %s, hwreg(HW_REG_XCC_ID)' % s(sXcc)); A('s_and_b32 %s, %s, 15' % (s(sXcc), s(sXcc)))
    A('s_add_u32 %s, %s, 0x%x' % (s(sOb), s(sXb), OBUF))
    A('s_add_u32 %s, %s, 0x%x' % (s(sOo), s(sOwn), OBUF))
    A('s_lshl_b32 %s, %s, 12' % (s(sSt), s(sT))); A('s_add_u32 %s, %s, 0x%x' % (s(sSt), s(sSt), XSTAT))
    wbase(True)
    A('s_lshl_b32 %s, %s, 7' % (s(sGF), s(sT))); A('s_add_u32 %s, %s, 0x%x' % (s(sGF), s(sGF), GFLAG))
    A('s_lshl_b32 %s, %s, 12' % (s(sT0), s(sW))); A('s_add_u32 %s, %s, %d' % (s(sT0), s(sT0), L_KV))
    A('v_add_u32 %s, %s, %s' % (v(vKV), s(sT0), v(vL16)))
    A('v_and_b32 v65, 31, %s' % v(vLane)); A('v_lshlrev_b32 v64, 2, v64'); A('v_sub_u32 v65, v65, v64')
    for r in range(16):
        A('v_cmp_le_i32 %s, %d, v65' % (s(sMASK + 2 * r, 2), (r & 3) + 8 * (r >> 2)))
    A('s_mov_b32 %s, 0xffff' % s(sHALF)); A('s_mov_b32 %s, 0xffff' % s(sHALF + 1))
    A('s_mov_b32 %s, 0' % s(sUP)); A('s_mov_b32 %s, -1' % s(sUP + 1))
    A('s_lshr_b32 %s, %s, 1' % (s(sT0), s(sC))); A('s_and_b32 %s, %s, 3' % (s(sT0), s(sT0))); A('s_lshl_b32 %s, %s, 10' % (s(sT0), s(sT0)))
    A('s_lshr_b32 %s, %s, 3' % (s(sT1), s(sC))); A('s_lshl_b32 %s, %s, 9' % (s(sT1), s(sT1))); A('s_add_u32 %s, %s, %s' % (s(sT0), s(sT0), s(sT1)))
    A('s_and_b32 %s, %s, 1' % (s(sT1), s(sC))); A('s_lshl_b32 %s, %s, 3' % (s(sT1), s(sT1))); A('s_add_u32 %s, %s, %s' % (s(sT0), s(sT0), s(sT1)))
    A('v_add_u32 %s, %s, %s' % (v(vStatSt), s(sT0), v(vL16)))
    A('v_mov_b32 v67, 0x%x' % OOB)
    A('v_cndmask_b32 %s, %s, v67, %s' % (v(vStatSt), v(vStatSt), s(sUP, 2)))
    A('v_lshrrev_b32 v64, 4, %s' % v(vLane)); A('v_lshlrev_b32 v64, 5, v64')
    A('s_lshl_b32 %s, %s, 4' % (s(sT1), s(sW))); A('s_add_u32 %s, %s, %d' % (s(sT1), s(sT1), 2048 - 32))
    A('v_add_u32 v64, %s, v64' % s(sT1))
    A('v_add_u32 v65, %s, %s' % (s(sM0), v(vL16)))
    A('s_cmp_lt_u32 %s, 2' % s(sW)); A('s_cselect_b64 vcc, -1, 0')
    A('v_cndmask_b32 %s, v64, v65, vcc' % v(vRec))
    A('s_lshl_b32 %s, %s, 16' % (s(sT1), s(sC))); A('s_add_u32 %s, %s, 0x%x' % (s(sT1), s(sT1), LKV))
    A('v_add_u32 %s, %s, %s' % (v(vRec), s(sT1), v(vRec)))
    A('s_and_b32 %s, %s, 1' % (s(sT0), s(sR))); A('s_lshl_b32 %s, %s, 12' % (s(sT0), s(sT0)))
    A('s_lshl_b32 %s, %s, 13' % (s(sT1), s(sW)))
    A('s_add_u32 %s, %s, %s' % (s(sRL[0]), s(sT0), s(sT1))); A('s_xor_b32 %s, %s, 4096' % (s(sRL[1]), s(sRL[0])))
    A('s_mul_i32 %s, %s, 163840' % (s(sT0), s(sC))); A('s_add_u32 %s, %s, 0x%x' % (s(sT0), s(sT0), RT))
    A('s_add_u32 %s, %s, %s' % (s(sRG[0]), s(sT0), s(sRL[0]))); A('s_add_u32 %s, %s, %s' % (s(sRG[1]), s(sT0), s(sRL[1])))

def sprinkle(ops, side):
    k = len(side); n = len(ops)
    pos = [(i * n) // max(k, 1) for i in range(k)]
    pi = 0
    for i, x in enumerate(ops):
        while pi < k and pos[pi] <= i:
            side[pi](); pi += 1
        run([x])
    while pi < k:
        side[pi](); pi += 1

def qkv0():
    TR2[0] = 256
    xt1 = [xdma(i, 0) for i in range(4)]
    A('s_mul_i32 %s, %s, 49152' % (s(sDma), s(sW)))
    A('s_lshl_b32 %s, %s, 10' % (s(sM0), s(sW)))
    A('s_and_b32 %s, %s, 1' % (s(sT0), s(sC))); A('s_and_b32 %s, %s, 1' % (s(sT1), s(sR)))
    A('s_lshl_b32 %s, %s, 1' % (s(sT1), s(sT1))); A('s_add_u32 %s, %s, %s' % (s(sT0), s(sT0), s(sT1)))
    for b in range(4):
        A('s_add_u32 %s, %s, %d' % (s(sRb[b]), s(sT0), b)); A('s_and_b32 %s, %s, 3' % (s(sRb[b]), s(sRb[b])))
    consts2()
    xt1 += [xdma(i, 0) for i in range(4, 16)]
    for b in range(4):
        for tile in (1, 2): kv0 = wdma(tile, 0, b)
    A('s_and_b32 %s, %s, 3' % (s(sT0), s(sC))); A('s_lshl_b32 %s, %s, 6' % (s(sT0), s(sT0)))
    A('s_bfe_u32 %s, %s, 0x10002' % (s(sT1), s(sC))); A('s_lshl_b32 %s, %s, 8' % (s(sT1), s(sT1)))
    A('s_or_b32 %s, %s, %s' % (s(sT0), s(sT0), s(sT1)))
    A('v_xor_b32 v88, %s, v16' % s(sT0)); A('v_xor_b32 v89, 32, v88')
    def xread(half):
        for ks in range(16):
            lds('ds_read_b128 %s, %s offset:%d' % (v(vX + 4 * (16 * half + ks), 4), v(16 + (ks & 7)), (ks >> 3) * 256))
        Ls = newlab('rs')
        A('s_lshr_b32 %s, %s, 3' % (s(sT0), s(sC))); A('s_cmp_lg_u32 %s, %d' % (s(sT0), half)); A('s_cbranch_scc1 %s' % Ls)
        A('ds_read_b128 a[240:243], v88'); A('ds_read_b128 a[244:247], v89')
        A.label(Ls)
    wait(vm=xt1[-1])
    stamp('x1')
    xread(0)
    A('s_lshl_b32 %s, s2, 2' % s(sT1))
    A('s_cmp_eq_u32 %s, 3' % s(sW)); A('s_cselect_b32 %s, %s, 0x1000' % (s(sT1), s(sT1)))
    A('s_cmp_lt_u32 s2, %d' % NZ); A('s_cselect_b32 %s, %s, 0x1000' % (s(sT1), s(sT1)))
    A('v_mov_b32 v68, 1'); A('s_mov_b64 exec, 1')
    vmem('buffer_store_dword v68, off, %s, %s sc0 sc1' % (s(SDBG, 4), s(sT1)))
    A('s_mov_b64 exec, -1')
    A('s_lshl_b32 %s, s2, 7' % s(sT0)); A('s_lshl_b32 %s, %s, 15' % (s(sT1), s(sW))); A('s_add_u32 %s, %s, %s' % (s(sT0), s(sT0), s(sT1)))
    A('s_add_u32 %s, %s, 0x%x' % (s(sT0), s(sT0), RT)); A('s_add_u32 %s, %s, %d' % (s(sT1), s(sT0), 8 * 163840))
    vmem('buffer_store_dwordx4 a[96:99], v90, %s, %s offen sc0 sc1' % (s(SWS, 4), s(sT0)))
    vmem('buffer_store_dwordx4 a[100:103], v90, %s, %s offen sc0 sc1' % (s(SWS, 4), s(sT1)))
    Lw = newlab('w3')
    A('s_cmp_lg_u32 %s, 3' % s(sW)); A('s_cbranch_scc1 %s' % Lw)
    A('s_add_u32 %s, %s, 32768' % (s(sT0), s(sT0))); A('s_add_u32 %s, %s, 32768' % (s(sT1), s(sT1)))
    A('buffer_store_dwordx4 a[104:107], v90, %s, %s offen sc0 sc1' % (s(SWS, 4), s(sT0)))
    A('buffer_store_dwordx4 a[108:111], v90, %s, %s offen sc0 sc1' % (s(SWS, 4), s(sT1)))
    A.label(Lw)
    for r in range(11, 16): A('v_mov_b32 %s, 0' % v(r))
    A('s_lshl_b32 %s, %s, 12' % (s(sT0), s(sW)))
    A('v_add_u32 v10, %s, %s' % (s(sT0), v(vW0)))
    csp_addr(9, 66)
    wait_all(vm=False)
    def dots(half):
        o = []
        for r in range(64):
            x = v(vX + 64 * half + r)
            o.append('v_dot2c_f32_bf16 v14, %s, %s' % (ONE, x)); o.append('v_dot2c_f32_bf16 v15, %s, %s' % (x, x))
        return o
    xt2 = []
    sprinkle(dots(0), [lambda i=i: xt2.append(xdma(i, 1)) for i in range(16)])
    wait(vm=kv0)
    barrier()
    stamp('kv0')
    def cs_half(half, bases):
        tk = {}; o = []
        def rd():
            for t_ in range(2):
                for k in range(4):
                    tk[(t_, k)] = trread(bases[t_] + k * 4, 10, WREG[0][1 + t_] + half * 16384 + k * 1024)
        o.append(rd)
        for t_ in range(2):
            for k in range(4):
                o.append(lambda t_=t_, k=k: wait(lg=tk[(t_, k)]))
                for j in range(4): o.append('v_dot2c_f32_bf16 %s, %s, %s' % (v(12 + t_), ONE, v(bases[t_] + k * 4 + j)))
        return o
    st = {}
    later = []
    for b in range(4):
        for tile in (1, 2):
            def f(tile=tile, b=b): st['kv1'] = wdma(tile, 1, b)
            later.append(f)
    qt = {}
    for i in range(8):
        def f(i=i):
            w_soff(0, i >> 2, i & 3)
            qt[i] = vmem('buffer_load_dwordx4 %s, %s, %s, %s offen' % (a(AW[0] + 4 * i, 4), v(vDmaW), s(SWQA, 4), s(sT2)))
        later.append(f)
    def f():
        A('v_min_u32 v8, %d, %s' % (NZ - 1, v(vLane))); A('v_lshlrev_b32 v8, 2, v8')
        st['dbg'] = vmem('buffer_load_dword v8, v8, %s, 0 offen sc1' % s(SDBG, 4))
    later.insert(8, f)
    ring = lambda ks: vT + 8 * (ks % 3)
    wt = {}
    sprinkle(cs_half(0, (96, 112)), later[:3])
    later = later[3:]
    def pre(k0):
        for ks in range(k0, k0 + 2):
            trfrag(ring(ks), R1, ks); wt[ks] = trfrag(ring(ks) + 4, R2, ks)
    def half_pass(k0, fill):
        slot = 0
        for ks in range(k0, k0 + 16):
            if ks + 2 < k0 + 16:
                trfrag(ring(ks + 2), R1, ks + 2); wt[ks + 2] = trfrag(ring(ks + 2) + 4, R2, ks + 2)
            wait(lg=wt[ks])
            X = v(vX + 4 * ks, 4); Wk = v(ring(ks), 4); Wv = v(ring(ks) + 4, 4)
            mfma(v(vAK, 16), Wk, X, '0' if ks == 0 else v(vAK, 16))
            for f in fill.get(slot, []): f()
            slot += 1
            mfma(v(vAV, 16), X, Wv, '0' if ks == 0 else v(vAV, 16))
            for f in fill.get(slot, []): f()
            slot += 1
    pre(0)
    assert len(later) <= 16
    half_pass(0, {2 * i + 1: [f] for i, f in enumerate(later)})
    wait(vm=xt2[-1])
    stamp('x2')
    xread(1)
    wait_all(vm=False)
    run(dots(1))
    A('s_mov_b32 %s, %s' % (s(sONE), ONE))
    F = stats_fns(0, st, (0, 112, 120))
    A('v_mov_b32 v96, v14'); A('v_mov_b32 v97, v15'); A('v_mov_b32 v98, v14'); A('v_mov_b32 v99, v15')
    for n in 'CDEF': F[n]()
    for i in range(4): F['G'](i)()
    F['c2a']()
    Lok = newlab('zok'); Lz = newlab('zw')
    wait(vm=st['dbg'])
    A('v_cmp_ne_u32 vcc, 0, v8'); A('s_cmp_eq_u64 vcc, exec'); A('s_cbranch_scc0 %s' % Lz)
    A.label(Lok)
    with ool():
        A.label(Lz)
        A('v_min_u32 v14, %d, %s' % (NZ - 1, v(vLane))); A('v_lshlrev_b32 v14, 2, v14')
        poll(14, SDBG, '1', 15)
        A('s_branch %s' % Lok)
    barrier()
    stamp('kv1')
    A('s_lshl_b32 %s, s2, 2' % s(sT0)); A('s_add_u32 %s, %s, 0x%x' % (s(sT0), s(sT0), RFLAG))
    A('s_cmp_eq_u32 %s, 0' % s(sW)); A('s_cselect_b32 %s, %s, 0x%x' % (s(sT0), s(sT0), OOB))
    flag_store(sT0, '1', vtmp=15)
    if STAMPS: F['c2a']()
    o = cs_half(1, (64, 112))
    run(o)
    for t_ in range(2): lds('ds_write_b32 v9, %s offset:%d' % (v(12 + t_), (1 + t_) * 1024))
    pre(16)
    fill = {}
    def add(slot, fn): fill.setdefault(slot, []).append(fn)
    def cl1():
        A('s_lshl_b32 %s, %s, 12' % (s(sT0), s(sR))); A('s_add_u32 %s, %s, 0x100000' % (s(sT1), s(sT0)))
        vmem('buffer_store_dwordx4 a[112:115], %s, %s, %s offen sc0 sc1' % (v(vRec), s(SWS, 4), s(sT0)))
        vmem('buffer_store_dwordx4 a[112:115], %s, %s, %s offen sc0 sc1' % (v(vRec), s(SWS, 4), s(sT1)))
    def cl2():
        vmem('buffer_store_dwordx4 a[112:115], %s, %s, %s offen sc0 sc1' % (v(vL16), s(SWS, 4), s(sOwn)))
        vmem('buffer_store_dwordx4 a[112:115], %s, %s, %s offen offset:1024 sc0 sc1' % (v(vL16), s(SWS, 4), s(sOwn)))
        st['cl'] = vmem('buffer_store_dwordx2 a[112:113], %s, %s, %s offen sc0 sc1' % (v(vStatSt), s(SWS, 4), s(sSt)))
    add(5, cl1); add(6, cl2)
    add(2, barrier)
    add(3, F['c2b'](1)); add(4, F['c2b'](2))
    add(8, F['c2c'](1)); add(9, F['c2d'](1)); add(10, F['c2c'](2)); add(11, F['c2d'](2))
    add(12, F['H'])
    for i in range(4): add(13 + i, F['I'](i, 1, 'bc'))
    for i in range(8):
        def f(i=i):
            wait(vm=qt[i])
            img_op1(True, 14, AW[0] + 4 * i, WREG[0][0], i)
        add(17 + 2 * i - (1 if i == 7 else 0), f)
    half_pass(16, fill)
    wait(lg=st['bc'])
    stamp('pass1_0')
    st['qt'] = qt
    return st
```

```python
from gen8a import *

def gather_gemm(base_s, tag, step, tmp, pre=None):
    xt = {}
    for ks in range(AHEAD): xt[ks] = gload(ks, base_s)
    if pre: pre()
    issued = AHEAD
    for ks in range(32):
        def waitx(lg=None):
            if tag is not None and ks % 2 == 0:
                wait(vm=xt[ks + 1])
                gcheck(ks, issued, base_s, tag, tmp)
                wait(lg=lg)
            else:
                wait(vm=xt[ks], lg=lg)
        def nextload():
            nonlocal issued
            if issued < 32:
                xt[issued] = gload(issued, base_s); issued += 1
        step(ks, waitx, nextload)

BARFIRST = optval('barfirst', 1)
NQ1 = optval('nq1', 8)
STSLOT = optval('stslot', 9)
SWN = optval('swn', 0); SWD = optval('swd', 0)
def qkv(L):
    typ = L & 1
    tag = L & 1
    MRB[0] = vX
    ring = lambda ks: vT + 8 * (ks % 3)
    qring = lambda q: 8 * 0 + (120, 124)[q % 2] if typ == 1 else (vX + 16 + 0)
    wt = {}; st = {}; wq = {}
    F = stats_fns(typ, st, (0, 96, 104))
    fill = {}
    def add(slot, fn): fill.setdefault(slot, []).append(fn)
    def ld_stats():
        for j in range(4):
            st['tok'] = vmem('buffer_load_dwordx4 %s, %s, %s, %s offen offset:%d sc1' % (v(96 + 4 * j, 4), v(vL16), s(SWS, 4), s(sSt), j * 1024))
    def chk_stats():
        wait(vm=st['tok'])
        St = newlab('sst'); Bk = newlab('sbk')
        regs = [96 + 2 * i for i in range(8)]
        tagbad(95, regs, tag)
        A.raw('    s_cbranch_vccnz %s' % St); A.raw(Bk + ':')
        with ool():
            A.label(St); A('s_mov_b32 %s, %d' % (s(sSpin), SPIN))
            Lp = newlab('slp'); A.label(Lp)
            ld_stats(); A('s_waitcnt vmcnt(0)')
            tagbad(95, regs, tag)
            A('s_cbranch_vccz %s' % Bk); spin_tail(Lp); A('s_branch %s' % Bk)
    add(STSLOT, ld_stats)
    st['csk'] = vX + 16
    seq = [chk_stats] + [F[n] for n in ['A', 'B', 'B2', 'C', 'D', 'E', 'F']] + [F['G'](i) for i in range(4)] + [F['H']]
    if typ == 0: seq += [F['I'](i, 1, 'bc', vX + 16) for i in range(4)]
    for i, f in enumerate(seq): add(STSLOT + 2 * AHEAD + 4 + i + i // 2, f)
    if L == 1:
        for i in range(8):
            def f(i=i): st['dma'] = rt_dma(3, REG[1]['o'], i)
            add(2 * (32 - AHEAD) + 2 * i, f)
    qring = lambda q: 112 + 4 * (q % 4)
    qat = {2 * q + 1: q for q in range(NQ1)}
    assert NQ1 >= 8
    assert len(qat) == NQ1 and all(q <= k for k, q in qat.items())
    def pre0():
        wait_all(vm=False)
        barrier()
        stamp('pre%d' % L)
    if BARFIRST: pre0()
    def pre():
        if not BARFIRST: pre0()
        for ks in range(2):
            wfrag(ring(ks), L, 'k', ks); wt[ks] = wfrag(ring(ks) + 4, L, 'v', ks)
        for q in range(2): wq[q] = wfrag(qring(q), L, 'q', q)
        if L == 1:
            run([F['c2a'], F['c2b'](1), F['c2b'](2), F['c2c'](1), F['c2d'](1), F['c2c'](2), F['c2d'](2)])
    def step(ks, waitx, nextload):
        if ks + 2 < 32:
            wfrag(ring(ks + 2), L, 'k', ks + 2); wt[ks + 2] = wfrag(ring(ks + 2) + 4, L, 'v', ks + 2)
        waitx(lg=wt[ks])
        X = v(vX + 4 * ks, 4); Wk = v(ring(ks), 4); Wv = v(ring(ks) + 4, 4)
        cK = '0' if ks == 0 else v(vAK, 16); cV = '0' if ks == 0 else v(vAV, 16)
        if typ == 0: mfma(v(vAK, 16), Wk, X, cK)
        else: mfma(v(vAK, 16), X, Wk, cK)
        nextload()
        for f in fill.pop(2 * ks, []): f()
        mfma(v(vAV, 16), X, Wv, cV)
        for f in fill.pop(2 * ks + 1, []): f()
        if ks in qat and ks < 31:
            q = qat[ks]
            wait(lg=wq[q])
            mfma(v(vAQ, 16), v(qring(q), 4), v(vX + 4 * q, 4), '0' if q == 0 else v(vAQ, 16))
            wq[q + 2] = wfrag(qring(q + 2), L, 'q', q + 2)
            st['qdone'] = q + 1
    gather_gemm(sXb, tag, step, 95, pre)
    assert not fill, fill.keys()
    wait(lg=st['bc'])
    stamp('pass1_%d' % L)
    return st

def pass2(L, fill, st):
    typ = L & 1; first_use = L < 2
    q0 = st.get('qdone', 0)
    ring2 = lambda ks: vT + 4 * (ks % 4)
    F = stats_fns(typ, st, (100, 0, 0))
    def add(slot, fn): fill.setdefault(slot, []).append(fn)
    if first_use:
        slice_addr(84, True)
        q = REG[L]['q']
        tk = [trread(96 + 4 * k, 84 + (q >> 16), (q & 0xffff) + k * 1024) for k in range(8)]
        csp_addr(81, 83)
        A('v_mov_b32 v82, 0')
    wq = {}
    for ks in range(q0, q0 + 3): wq[ks] = wfrag(ring2(ks), L, 'q', ks)
    at = 1
    if first_use:
        for k in range(8):
            wait(lg=tk[k])
            for j in range(4): A('v_dot2c_f32_bf16 v82, %s, %s' % (s(sONE), v(96 + 4 * k + j)))
        lds('ds_write_b32 v81, v82')
        if L == 1:
            for r in range(32): A('v_accvgpr_write_b32 a%d, %s' % (AW[1] + r, v(96 + r)))
        add(1, F['c2a']); add(3, barrier); add(4, F['c2b'](0)); add(7, F['c2c'](0)); add(8, F['c2d'](0))
        at = 9
    for i in range(4): add(at + i, F['I'](i, 0, 'csq', vCSA))
    for ks in range(q0, 32):
        if ks + 3 < 32: wq[ks + 3] = wfrag(ring2(ks + 3), L, 'q', ks + 3)
        wait(lg=wq[ks])
        mfma(v(vAQ, 16), v(ring2(ks), 4), v(vX + 4 * ks, 4), '0' if ks == 0 else v(vAQ, 16))
        for f in fill.pop(ks - q0, []): f()
    assert not fill, fill.keys()

def qepi(st):
    wait(lg=st['csq'])
    ln_T(vAQ, vCSA, vRstd, vMr)

def dbg_q():
    A('buffer_store_dwordx4 v[16:19], %s, %s, %s offen' % (v(vL16), s(SWS, 4), s(sOo)))
    A('buffer_store_dwordx4 v[20:23], %s, %s, %s offen offset:1024' % (v(vL16), s(SWS, 4), s(sOo)))

def layerA(L):
    st = qkv0() if L == 0 else qkv(L)
    ktag = L >> 1
    A('s_lshl_b32 %s, %s, 4' % (s(sT0), s(sT))); A('s_add_u32 %s, %s, %s' % (s(sT0), s(sT0), s(sC)))
    A('s_lshl_b32 %s, %s, 12' % (s(sT0), s(sT0))); A('s_add_u32 %s, %s, 0x%x' % (s(sT0), s(sT0), KVBUF))
    def kvst(j, src): return vmem('buffer_store_dwordx4 %s, %s, %s, %s offen offset:%d sc0 sc1' % (v(src, 4), v(vL16), s(SWS, 4), s(sT0), j * 1024))
    ln_T(vAK, st.get('csk', vCSA), vRstd, vMr); pack(vAK)
    settag(vAK, ktag); settag(vAK + 4, ktag)
    kvst(0, vAK); kvst(1, vAK + 4)
    ln_N(vAV, vCsV); pack(vAV)
    settag(vAV, ktag); settag(vAV + 4, ktag)
    kvst(2, vAV); kvtok = kvst(3, vAV + 4)
    for j, src in enumerate([vAK, vAK + 4, vAV, vAV + 4]):
        lds('ds_write_b128 %s, %s offset:%d' % (v(vKV), v(src, 4), 32768 + j * 1024))
    A('v_mul_f32 %s, 0x%08x, %s' % (v(vRstd), QS, v(vRstd))); A('v_mul_f32 %s, 0x%08x, %s' % (v(vMr), QS, v(vMr)))
    fill = {}
    def halo_prep():
        A('s_lshr_b32 %s, %s, 1' % (s(sT0), s(sW))); A('s_add_u32 %s, %s, %s' % (s(sT0), s(sT0), s(sR)))
        A('s_sub_u32 %s, %s, 2' % (s(sVal), s(sT0)))
        A('s_and_b32 %s, %s, 1' % (s(sT2), s(sW)))
        A('s_lshl_b32 %s, %s, 1' % (s(sT1), s(sVal))); A('s_add_u32 %s, %s, %s' % (s(sT1), s(sT1), s(sT2)))
    def halo_prep2():
        A('s_lshl_b32 %s, %s, 5' % (s(sT1), s(sT1))); A('s_add_u32 %s, %s, %s' % (s(sT1), s(sT1), s(sC)))
        A('s_lshl_b32 %s, %s, 12' % (s(sT1), s(sT1))); A('s_add_u32 %s, %s, 0x%x' % (s(sHalo0), s(sT1), KVBUF))
        A('s_cmp_lt_u32 %s, 16' % s(sVal)); A('s_cselect_b32 %s, %s, 0x%x' % (s(sHalo0), s(sHalo0), OOB))
        A('s_add_u32 %s, %s, 65536' % (s(sHalo1), s(sHalo0)))
    def halo_dma():
        A('s_lshl_b32 %s, %s, 13' % (s(sT0), s(sW)))
        for i in range(2):
            A('s_add_u32 m0, %s, %d' % (s(sT0), L_KV + i * 4096))
            for j in range(4):
                vmem('buffer_load_dwordx4 %s, %s, %s offen offset:%d sc1 lds' % (v(vL16), s(SWS, 4), s(sHalo0 + i), j * 1024))
    if L == 0:
        def fl_a():
            A('s_lshl_b32 %s, %s, 4' % (s(sT0), s(sC))); A('s_add_u32 %s, %s, %s' % (s(sT0), s(sT0), s(sR)))
            A('s_lshl_b32 %s, %s, 5' % (s(sT0), s(sT0))); A('s_add_u32 %s, %s, %s' % (s(sT0), s(sT0), s(sW)))
            A('s_lshl_b32 %s, %s, 2' % (s(sT0), s(sT0))); A('s_add_u32 %s, %s, 0x%x' % (s(sT0), s(sT0), HFLAG))
            A('v_mov_b32 v86, %s' % s(sT0))
            A('s_lshl_b32 %s, %s, 2' % (s(sT0), s(sC))); A('s_add_u32 %s, %s, %s' % (s(sT1), s(sT0), s(sGF)))
            A('v_writelane_b32 v86, %s, 1' % s(sT1))
            A('s_add_u32 %s, %s, %s' % (s(sT0), s(sT0), s(sW))); A('s_lshl_b32 %s, %s, 5' % (s(sT0), s(sT0))); A('s_add_u32 %s, %s, %s' % (s(sT0), s(sT0), s(sR)))
            A('s_lshl_b32 %s, %s, 2' % (s(sT0), s(sT0))); A('s_add_u32 %s, %s, 0x%x' % (s(sT0), s(sT0), KFLAG))
            A('v_writelane_b32 v86, %s, 2' % s(sT0))
            A('s_or_b32 %s, %s, 0x100' % (s(sT1), s(sXcc)))
            A('v_mov_b32 v87, %s' % s(sT1))
        def fl_b():
            wait(vm=kvtok)
            A('s_mov_b64 exec, 7')
            vmem('buffer_store_dword v87, v86, %s, 0 offen sc0 sc1' % s(SWS, 4))
            A('s_mov_b64 exec, -1')
        fl_a()
        fill[FLSLOT] = [fl_b]
        wait_all(vm=False)
        barrier()
        fill.setdefault(18, []).append(halo_prep); fill.setdefault(19, []).append(halo_prep2)
    else:
        fill.setdefault(6, []).append(halo_prep); fill.setdefault(7, []).append(halo_prep2)
    pass2(L, fill, st)
    if L == 2:
        barrier()
        halo_dma()
    qepi(st)
    pack(vAQ)
    stamp('pass2_%d' % L)
    if STOP == 1 and L == 0: dbg_q(); ckpt(1)
    if L == 0:
        TR2[0] = 512
        Lno = newlab('nohalo')
        A('s_cmp_ge_u32 %s, 16' % s(sVal)); A('s_cbranch_scc1 %s' % Lno)
        A('s_lshl_b32 %s, %s, 4' % (s(sT1), s(sC))); A('s_add_u32 %s, %s, %s' % (s(sT1), s(sT1), s(sVal)))
        A('s_lshl_b32 %s, %s, 7' % (s(sT1), s(sT1))); A('s_add_u32 %s, %s, 0x%x' % (s(sT1), s(sT1), HFLAG))
        A('s_and_b32 %s, %s, 1' % (s(sT2), s(sW))); A('s_lshl_b32 %s, %s, 3' % (s(sT2), s(sT2))); A('s_add_u32 %s, %s, %s' % (s(sT1), s(sT1), s(sT2)))
        A('v_and_b32 v96, 1, %s' % v(vLane)); A('v_lshlrev_b32 v96, 2, v96')
        poll(96, SWS, '1', 97, soff=s(sT1))
        A.label(Lno)
        halo_dma()
        A('s_mov_b32 %s, 0x%x' % (s(sT3), RFLAG))
        vmem('buffer_load_dwordx4 v[104:107], %s, %s, %s offen sc1' % (v(vL16), s(SWS, 4), s(sT3)))
        wbase(False)
        A('v_add_u32 %s, 0x10000, %s' % (v(vL16h), v(vL16)))
        slice_addr(80, True)
        for t_, key in enumerate('qkv'):
            for i in range(8): sl_trsave(80, AW[0] + 32 * t_ + 4 * i, REG[0][key], i)
        for d in range(8): A('v_accvgpr_read_b32 %s, a%d' % (v(vRES + d), 240 + d))
        Fr = vRES
        for x, y in ((0, 2), (1, 3), (4, 6), (5, 7)): A('v_permlane32_swap_b32 %s, %s' % (v(Fr + x), v(Fr + y)))
    else:
        slice_addr(82)
        for i in range(8): sl_write(82, a(AWO[0] + 4 * i, 4), REG[L]['o'], i)
    stamp('halopoll%d' % L)
    PM = 24; VR = 32; OA = 48; KF = 64; PF = 100
    A('v_mov_b32 v108, 0xffff'); A('v_mov_b32 v109, 0xffff0000')
    for d in range(8):
        A('v_cndmask_b32 %s, 0, v108, %s' % (v(PM + d), s(sMASK + 4 * d, 2)))
        A('v_cndmask_b32 v110, 0, v109, %s' % s(sMASK + 4 * d + 2, 2))
        A('v_or_b32 %s, %s, v110' % (v(PM + d), v(PM + d)))
    for i in range(16): A('v_mov_b32 %s, %s' % (v(VR + i), s(sONE)))
    A('s_mov_b64 %s, 0' % s(sBad, 2))
    if L == 0:
        A('v_and_b32 v96, 15, %s' % v(vLane)); A('v_lshlrev_b32 v96, 2, v96')
        A('s_movk_i32 %s, 0x100' % s(sT0))
        poll(96, SWS, s(sT0), 97, soff=s(sGF))
        A('v_and_b32 v97, 0xff, v97')
        A('v_cmp_eq_u32 vcc, %s, v97' % s(sXcc)); A('s_cmp_eq_u64 vcc, exec')
        A('s_cselect_b32 %s, %d, 0' % (s(sFast), 0 if FORCE_SLOW else 1))
        wait_all()
    else:
        Lp = newlab('hlp'); Ld = newlab('hd'); Lr = newlab('hr')
        A('s_lshl_b32 %s, %s, 12' % (s(sT0), s(sW)))
        A('v_add_u32 v96, %s, %s' % (s(sT0), v(vKV)))
        A('s_mov_b32 %s, %d' % (s(sSpin), SPIN))
        A.label(Lp)
        wait_all()
        A('s_cmp_ge_u32 %s, 16' % s(sVal)); A('s_cbranch_scc1 %s' % Ld)
        for i in range(8): A('ds_read_b32 %s, v96 offset:%d' % (v(64 + i), i * 1024))
        A('s_waitcnt lgkmcnt(0)')
        tagbad(72, range(64, 72), ktag)
        A('s_cbranch_vccnz %s' % Lr)
        A.label(Ld)
        with ool():
            A.label(Lr)
            halo_dma()
            spin_tail(Lp)
            A('s_waitcnt vmcnt(0)')
            A('s_branch %s' % Ld)
    barrier()
    stamp('halo%d' % L)
    T = lambda j: 112 + 16 * j
    otag = 0 if L == 0 else 0
    jobs = []
    if L == 0:
        def rcheck():
            Lr = newlab('rp'); Ld = newlab('rd'); Lq = newlab('rq')
            A('v_min3_u32 v104, v104, v105, v106'); A('v_min_u32 v104, v104, v107')
            A('v_cmp_eq_u32 vcc, 0, v104')
            A.raw('    s_cbranch_vccnz %s' % Lr); A.raw(Ld + ':')
            with ool():
                A.label(Lr)
                A('s_mov_b32 %s, %d' % (s(sSpin), SPIN)); A('s_mov_b32 %s, 0x%x' % (s(sT3), RFLAG))
                A.label(Lq)
                A('buffer_load_dwordx4 v[104:107], %s, %s, %s offen sc1' % (v(vL16), s(SWS, 4), s(sT3)))
                A('s_waitcnt vmcnt(0)')
                A('v_min3_u32 v104, v104, v105, v106'); A('v_min_u32 v104, v104, v107')
                A('v_cmp_eq_u32 vcc, 0, v104')
                A('s_cbranch_vccz %s' % Ld)
                spin_tail(Lq)
                A('s_branch %s' % Ld)
        def touches():
            A('v_and_b32 v111, 15, %s' % v(vLane)); A('v_lshlrev_b32 v111, 7, v111')
            A('v_add_u32 v111, %s, v111' % s(sOwn))
            A('v_add_u32 v104, 0x%x, v111' % OBUF)
            A('v_cndmask_b32 v111, v111, v104, %s' % s(sHALF, 2))
            A('s_lshl_b32 %s, %s, 8' % (s(sT0), s(sC))); A('s_add_u32 %s, %s, %s' % (s(sT0), s(sT0), s(sSt)))
            A('v_and_b32 v104, 1, %s' % v(vLane)); A('v_lshl_add_u32 v104, v104, 7, %s' % s(sT0))
            A('v_cndmask_b32 v111, v111, v104, %s' % s(sUP, 2))
            A('s_mov_b32 exec_hi, 3')
            vmem('buffer_load_dword a255, v111, %s, 0 offen sc1' % s(SWS, 4))
            A('s_mov_b64 exec, -1')
            A('s_add_u32 %s, %s, %d' % (s(sT0), s(sRG[0]), 3 * 32768))
            A('v_lshlrev_b32 v111, 7, %s' % v(vLane))
            A('s_mov_b32 exec_hi, 0')
            vmem('buffer_load_dword a255, v111, %s, %s offen sc1' % (s(SWS, 4), s(sT0)))
            A('s_mov_b64 exec, -1')
        nop = lambda: None
        jobs = [rcheck, touches] + [nop] * JGAP
        for t5, reg in ((4, REG[0]['o']), (1, REG[1]['k']), (2, REG[1]['v'])):
            for i in range(8): jobs.append(lambda t5=t5, reg=reg, i=i: rt_dma(t5, reg, i))
        for i in range(8):
            def f(i=i):
                vmem('buffer_load_dwordx4 %s, %s, %s, %s offen offset:%d sc1' % (a(AW[1] + 4 * i, 4), v(vL16), s(SWS, 4), s(sRG[i >> 2]), (i & 3) * 1024))
            jobs.append(f)
        if STAMPS:
            for k, p in enumerate((1, 11 + JGAP, 22 + JGAP, 33 + JGAP)):
                jobs[p] = (lambda f=jobs[p], k=k: (f(), sstamp(k)))
    def kload_(u, j): return lds('ds_read_b128 %s, %s offset:%d' % (v(KF + 4 * j, 4), v(vKV), j * 4096 + u * 1024))
    def vload_(u, j, slot):
        A('s_mov_b64 exec, %s' % s(sHALF, 2))
        lds('ds_read_b128 %s, %s offset:%d' % (v(VR + 8 * slot, 4), v(vKV), j * 4096 + 2048 + u * 256))
        t = lds('ds_read_b128 %s, %s offset:%d' % (v(VR + 8 * slot + 4, 4), v(vKV), j * 4096 + 3072 + u * 256))
        A('s_mov_b64 exec, -1')
        return t
    def merge():
        return ['v_cndmask_b32 %s, %s, %s, %s' % (v(T(8) + r), v(T(0) + r), v(T(8) + r), s(sMASK + 2 * r, 2)) for r in range(16)]
    def maxops(j, m0, m1, first=False):
        o = []
        for p in range(8):
            m = (m0, m1)[p & 1]
            if first and p < 2: o.append('v_max_f32 %s, %s, %s' % (v(m), v(T(j) + 2 * p), v(T(j) + 2 * p + 1)))
            else: o.append('v_max3_f32 %s, %s, %s, %s' % (v(m), v(m), v(T(j) + 2 * p), v(T(j) + 2 * p + 1)))
        return o
    def maxfin(m0, m1):
        return ['v_max_f32 %s, %s, %s' % (v(m0), v(m0), v(m1)), 'v_mov_b32 %s, %s' % (v(m1), v(m0)),
                'v_permlane32_swap_b32 %s, %s' % (v(m1), v(m0)), 'v_max_f32 %s, %s, %s' % (v(m0), v(m0), v(m1)),
                'v_sub_f32 %s, 0, %s' % (v(m0), v(m0))]
    def addm(j, nm): return ['v_pk_add_f32 %s, %s, %s op_sel_hi:[1,0]' % (v(T(j) + 2 * p, 2), v(T(j) + 2 * p, 2), v(nm, 2)) for p in range(8)]
    def exps(j): return ['v_exp_f32 %s, %s' % (v(T(j) + r), v(T(j) + r)) for r in range(16)]
    def cvts(j): return ['v_cvt_pk_bf16_f32 %s, %s, %s' % (v(T(j) + d), v(T(j) + 2 * d), v(T(j) + 2 * d + 1)) for d in range(8)]
    def split():
        o = []
        for d in range(8):
            o.append('v_bfi_b32 %s, %s, 0, %s' % (v(PF + d), v(PM + d), v(T(8) + d)))
            o.append('v_and_b32 %s, %s, %s' % (v(T(8) + d), v(PM + d), v(T(8) + d)))
        return o
    def ofin(u, check):
        o = ['v_rcp_f32 %s, %s' % (v(OA + 9), v(OA + 8))]
        if check:
            o += ['v_cmp_ngt_f32 vcc, 0x%08x, %s' % (f2u(2.0 ** (100 if not FORCE_FB else FORCE_FB)), v(OA + 8)), 's_or_b64 %s, %s, vcc' % (s(sBad, 2), s(sBad, 2))]
        if check == 2:
            o += ['v_cmp_nlt_f32 vcc, 0x%08x, %s' % (f2u(2.0 ** -100), v(OA + 8)), 's_or_b64 %s, %s, vcc' % (s(sBad, 2), s(sBad, 2))]
        o += ['v_mul_f32 %s, %s, %s' % (v(OA + r), v(OA + r), v(OA + 9)) for r in range(8)]
        o += ['v_cvt_pk_bf16_f32 %s, %s, %s' % (v(OA + 12 + d), v(OA + 2 * d), v(OA + 2 * d + 1)) for d in range(4)]
        o.append(lambda: settag(OA + 12, otag))
        if check:
            o += ['s_cmp_eq_u64 %s, 0' % s(sBad, 2), 's_cselect_b32 %s, %s, 0x%x' % (s(sVal), s(sOo), OOB)]
        else:
            o += ['s_mov_b32 %s, %s' % (s(sVal), s(sOo))]
        def sto(sc):
            vmem('buffer_store_dwordx4 %s, %s, %s, %s offen offset:%d%s' % (v(OA + 12, 4), v(vL16), s(SWS, 4), s(sVal), u * 1024, sc))
        o.append(lambda: dual(sto))
        return o
    def neginf(j): return ['v_mov_b32 %s, 0xff800000' % v(T(j) + r) for r in range(16)]

    def fast(chk, jobs):
        kt = {}; vt = {}; stream = []; side = []; marks = {}
        def S(ops, need=None, atomic=False):
            for i, x in enumerate(ops): stream.append((x, need if i == 0 else None, atomic and i >= len(ops) - 3))
        def mark(n): marks[n] = len(stream)
        def sd(name, after, mf, fn): side.append((name, after, mf, fn))
        def kl(u, j):
            def f(): kt[(u, j)] = kload_(u, j)
            return f
        def vl(u, j, slot):
            def f(): vt[(u, j)] = vload_(u, j, slot)
            return f
        def sm(u, j, c):
            def f():
                wait(lg=kt[(u, j)])
                mfma(v(T(j), 16), v(KF + 4 * j, 4), v(vAQ + 4 * u, 4), c)
            return f
        def pv(u, j, slot, half, breg, first=False):
            def f():
                if chk and j == 0: return
                wait(lg=vt[(u, j)])
                if chk and j < 8:
                    Lk = newlab('sk')
                    A.raw('    s_cmp_lt_u32 %s, %d' % (s(sT), 8 - j)); A.raw('    s_cbranch_scc1 %s' % Lk)
                mfma(v(OA, 16), v(VR + 8 * slot + 4 * half, 4), v(breg, 4), '0' if first else v(OA, 16))
                if chk and j < 8: A.raw(Lk + ':')
            return f
        NM = [108, 110]
        C = v(T(0), 16)
        def prol(u):
            S(merge(), need='s%d_8' % u)
            S(maxops(8, NM[u], 109, True) + maxfin(NM[u], 109))
            S(['v_mov_b32 %s, %s' % (v(T(0) + r), v(NM[u])) for r in range(16)])
            mark('c%d' % u)
        def tile(u, j):
            if j == 8:
                S(addm(8, NM[u])); S(exps(8) + cvts(8) + split())
            else:
                S(exps(j) + cvts(j), need='s%d_%d' % (u, j))
            mark('p%d_%d' % (u, j))
        mark('start')
        prol(0)
        for j in (8, 1, 2, 3): tile(0, j)
        prol(1)
        for j in (4, 5, 6, 7): tile(0, j)
        tile(1, 8)
        S(ofin(0, 2 if chk else 1), need='pv0_7', atomic=True); mark('of0')
        for j in range(1, 8): tile(1, j)
        S(ofin(1, 2 if chk else 1), need='pv1_7', atomic=True)
        for j in (0, 8): sd('', 'start', False, kl(0, j))
        sd('', 'start', True, sm(0, 0, '0')); sd('s0_8', 'start', True, sm(0, 8, '0'))
        for j in range(1, 8): sd('', 'start', False, kl(0, j))
        sd('', 'start', False, vl(0, 8, 0)); sd('', 'start', False, vl(0, 0, 1))
        for j in (0, 8): sd('', 'start', False, kl(1, j))
        for j in range(1, 6):
            sd('s0_%d' % j, 'c0', True, sm(0, j, C)); sd('', 'c0', False, kl(1, j))
        b8 = T(8)
        def pv8(u, after):
            sd('', after, True, pv(u, 8, 0, 0, b8, True)); sd('', after, True, pv(u, 8, 0, 1, b8 + 4)); sd('', after, False, vl(u, 1, 0))
            sd('', after, True, pv(u, 0, 1, 0, PF)); sd('', after, True, pv(u, 0, 1, 1, PF + 4)); sd('', after, False, vl(u, 2, 1))
        def pvj(u, j):
            slot = (j - 1) % 2; m = 'p%d_%d' % (u, j)
            sd('', m, True, pv(u, j, slot, 0, T(j))); sd('pv%d_%d' % (u, j), m, True, pv(u, j, slot, 1, T(j) + 4))
            if j + 2 <= 7: sd('', m, False, vl(u, j + 2, slot))
            elif u == 0: sd('', m, False, vl(1, 8 if slot == 0 else 0, slot))
        pv8(0, 'p0_8')
        pvj(0, 1)
        for j in (6, 7):
            sd('s0_%d' % j, 'c0', True, sm(0, j, C)); sd('', 'c0', False, kl(1, j))
        pvj(0, 2)
        sd('', 'p0_2', True, sm(1, 0, '0')); sd('s1_8', 'p0_2', True, sm(1, 8, '0'))
        pvj(0, 3)
        for j in (1, 2): sd('s1_%d' % j, 'c1', True, sm(1, j, C))
        pvj(0, 4)
        for j in (3, 4): sd('s1_%d' % j, 'c1', True, sm(1, j, C))
        for j in (5, 6, 7):
            pvj(0, j); sd('s1_%d' % j, 'c1', True, sm(1, j, C))
        pv8(1, 'of0')
        for j in range(1, 8): pvj(1, j)
        def cost(x): return 8 if (isinstance(x, str) and x.startswith(('v_exp', 'v_rcp'))) else 4
        def ispk(x): return isinstance(x, str) and x.startswith('v_pk')
        si = 0; since = 99; done = set()
        def emit_side():
            nonlocal si, since
            name, after, mf, fn = side[si]; fn(); done.add(name); si += 1
            since = 0 if mf else since + 4
        tnow = 0; tjob = JOB0
        prev_scc = False
        for i, (x, need_, atomic) in enumerate(stream):
            tnow += cost(x) * 1.32
            vcc_live = isinstance(x, str) and x.startswith('s_or_b64')
            if not atomic and not vcc_live:
                if jobs and tnow >= tjob:
                    jobs.pop(0)(); tjob += JOBP
                if need_:
                    while need_ not in done:
                        assert marks[side[si][1]] <= i, (need_, side[si])
                        emit_side()
                n = 0
                while si < len(side) and marks[side[si][1]] <= i and n < 2:
                    if side[si][2]:
                        if since < 28: break
                        c = 0; blk = False
                        for y, _, _ in stream[i:i + 12]:
                            if c >= 44: break
                            if ispk(y): blk = True; break
                            c += cost(y)
                        if blk: break
                    emit_side(); n += 1
            run([x])
            since += cost(x)
        assert si == len(side)
        assert not jobs, len(jobs)

    Lchk = newlab('achk'); Lj = newlab('ajoin'); Lslow = newlab('aslow'); Ldone = newlab('adone')
    A('s_cmp_lt_u32 %s, 8' % s(sT))
    A('s_cbranch_scc1 %s' % Lchk)
    tmp = []
    sv = (A.out, A.hist, VM.n, VM.done, LG.n, LG.done)
    A.out = tmp; A.hist = []
    A.label(Lchk); fast(True, list(jobs)); A('s_branch %s' % Lj)
    A.out, A.hist, VM.n, VM.done, LG.n, LG.done = sv
    OOL.extend(tmp)
    fast(False, list(jobs))
    A.label(Lj)
    A('s_cmp_lg_u64 %s, 0' % s(sBad, 2))
    A('s_cbranch_scc1 %s' % Lslow)
    A.label(Ldone)
    tmp = []
    sv = (A.out, A.hist, VM.n, VM.done, LG.n, LG.done)
    A.out = tmp; A.hist = []
    A.label(Lslow)
    wait_all()
    for u in range(2):
        for j in range(9): kload_(u, j)
        vload_(u, 8, 0); vload_(u, 0, 1)
        wait_all(vm=False)
        for j in range(9): mfma(v(T(j), 16), v(KF + 4 * j, 4), v(vAQ + 4 * u, 4), '0')
        Lv = newlab('valid')
        for j in range(8):
            A('s_cmp_ge_u32 %s, %d' % (s(sT), 8 - j)); A('s_cbranch_scc1 %s' % Lv)
            run(neginf(j))
        A.label(Lv)
        run(merge() + maxops(8, 108, 109, True))
        for j in range(1, 8): run(maxops(j, 108, 109))
        run(maxfin(108, 109))
        for j in range(1, 9): run(addm(j, 108) + exps(j) + cvts(j))
        run(split())
        mfma(v(OA, 16), v(VR, 4), v(T(8), 4), '0'); mfma(v(OA, 16), v(VR + 4, 4), v(T(8) + 4, 4), v(OA, 16))
        mfma(v(OA, 16), v(VR + 8, 4), v(PF, 4), v(OA, 16)); mfma(v(OA, 16), v(VR + 12, 4), v(PF + 4, 4), v(OA, 16))
        for j in range(1, 8):
            A('s_nop 7')
            vload_(u, j, 0)
            wait_all(vm=False)
            mfma(v(OA, 16), v(VR, 4), v(T(j), 4), v(OA, 16)); mfma(v(OA, 16), v(VR + 4, 4), v(T(j) + 4, 4), v(OA, 16))
        run(ofin(u, 0))
    A('s_waitcnt vmcnt(0)')
    A('s_branch %s' % Ldone)
    A.out, A.hist, VM.n, VM.done, LG.n, LG.done = sv
    OOL.extend(tmp)
    if L == 0: sflush(['a_rchk', 'a_j11', 'a_j20', 'a_clean'])
    stamp('attn%d' % L)
    if L == 0: ckpt(2)
    wo_phase(L)
HSLOT = optval('hslot', 24)
JGAP = optval('jgap', 0)
FLSLOT = optval('flslot', 6)

def wo_phase(L):
    typ = L & 1; nt = 1 - typ
    ring = lambda ks: vT + 4 * (ks % 4)
    wt = {}
    def unpack():
        for d in range(8):
            A('v_lshlrev_b32 %s, 16, %s' % (v(vAQ + 2 * d), v(vRES + d)))
            A('v_and_b32 %s, 0xffff0000, %s' % (v(vAQ + 2 * d + 1), v(vRES + d)))
    fill = {}
    def add(slot, fn): fill.setdefault(slot, []).append(fn)
    if L == 0:
        A('s_lshl_b32 %s, %s, 2' % (s(sT0), s(sC))); A('s_add_u32 %s, %s, %s' % (s(sT0), s(sT0), s(sGF)))
        A('s_or_b32 %s, %s, 0x200' % (s(sT1), s(sXcc)))
        wait_all(lg=False)
        dual(lambda sc: flag_store(sT0, s(sT1), sc))
        barrier()
        unpack()
        slice_addr(80, True); slice_addr(82)
        A('s_lshl_b32 %s, %s, 2' % (s(sT0), s(sC))); A('s_add_u32 %s, %s, %s' % (s(sT0), s(sT0), s(sW)))
        A('s_lshl_b32 %s, %s, 7' % (s(sT0), s(sT0))); A('s_add_u32 %s, %s, 0x%x' % (s(sT0), s(sT0), KFLAG))
        A('v_mov_b32 v96, %s' % s(sT0)); A('v_mov_b32 v97, %s' % s(sGF))
        A('v_cndmask_b32 v96, v96, v97, %s' % s(sHALF, 2))
        A('v_and_b32 v97, 15, %s' % v(vLane)); A('v_lshl_add_u32 v96, v97, 2, v96')
        A('v_mov_b32 v97, 0x200'); A('v_cndmask_b32 v98, 1, v97, %s' % s(sHALF, 2))
        csp_addr(89, 90)
        A('v_mov_b32 v90, 0'); A('v_mov_b32 v91, 0')
        for ks in range(3): wt[ks] = wfrag(ring(ks), L, 'o', ks)
        poll(96, SWS, None, 97, cmpv=98)
        for i in range(8): add(22 + i, lambda i=i: sl_trsave(80, AWO[0] + 4 * i, REG[0]['o'], i))
        ck = {}
        creg = lambda n: 32 + 4 * (n % 8)
        for n in range(16):
            t_, k = divmod(n, 8)
            reg = REG[1]['kv'[t_]]
            def rd(n=n, reg=reg, k=k): ck[n] = trread(creg(n), 80 + (reg >> 16), (reg & 0xffff) + k * 1024)
            def dt(n=n, t_=t_):
                wait(lg=ck[n])
                for j in range(4): A('v_dot2c_f32_bf16 %s, %s, %s' % (v(90 + t_), s(sONE), v(creg(n) + j)))
            def wr(n=n, reg=reg, k=k):
                sl_write(82, v(creg(n), 4), reg, k)
                for j in range(4): A('v_accvgpr_write_b32 a%d, %s' % (AW[1] + 32 + 4 * n + j, v(creg(n) + j)))
            add(n, rd); add(-(3 + n), dt); add(3 + n, wr)
        def cw():
            for t_ in range(2): lds('ds_write_b32 v89, %s offset:%d' % (v(90 + t_), (1 + t_) * 1024))
        add(21, cw)
        for h in range(2): A('v_add_u32 %s, %s, %s' % (v(84 + h), s(sRL[h]), v(vL16h)))
        for i in range(8):
            add(20 + i + i // 2, lambda i=i: lds('ds_write_b128 %s, %s offset:%d' % (v(84 + (i >> 2)), a(AW[1] + 4 * i, 4), (REG[1]['q'] & 0xffff) + (i & 3) * 1024)))
        pre = None
    else:
        def pre():
            for ks in range(3): wt[ks] = wfrag(ring(ks), L, 'o', ks)
            unpack()
            if L < 3: slice_addr(82)
        if L < 3:
            for n, (t_, key) in enumerate(((1, 'k'), (2, 'v'), (0, 'q'))):
                for i in range(8):
                    add(1 + (5 * (8 * n + i)) // 4, lambda t_=t_, key=key, i=i: sl_write(82, a(AW[nt] + 32 * t_ + 4 * i, 4), REG[L + 1][key], i))
            if L == 2: add(20, barrier)
    stamp('opoll%d' % L)
    def step(ks, waitx, nextload):
        if ks + 3 < 32: wt[ks + 3] = wfrag(ring(ks + 3), L, 'o', ks + 3)
        for f in fill.pop(-ks, []) if ks else []: f()
        waitx(lg=wt[ks])
        mfma(v(vAQ, 16), v(ring(ks), 4), v(vX + 4 * ks, 4), v(vAQ, 16))
        nextload()
        for f in fill.pop(ks, []): f()
    gather_gemm(sOb, None if L == 0 else (L & 1), step, 95, pre)
    assert not fill
    stamp('wo%d' % L)
    if L == 3:
        pack(vAQ); return
    tag = (L + 1) & 1
    F = vAQ
    pack(vAQ)
    A('v_mov_b32 %s, %s' % (v(vRES), v(F))); A('v_mov_b32 %s, %s' % (v(vRES + 4), v(F + 4)))
    settag(F, tag); settag(F + 4, tag)
    S, Q = 94, 95
    def st(sc):
        vmem('buffer_store_dwordx4 %s, %s, %s, %s offen%s' % (v(F, 4), v(vL16), s(SWS, 4), s(sOwn), sc))
        vmem('buffer_store_dwordx4 %s, %s, %s, %s offen offset:1024%s' % (v(F + 4, 4), v(vL16), s(SWS, 4), s(sOwn), sc))
        A('v_mov_b32 %s, 0' % v(S)); A('v_mov_b32 %s, 0' % v(Q))
        for d in range(8):
            A('v_dot2c_f32_bf16 %s, %s, %s' % (v(S), s(sONE), v(F + d)))
            A('v_dot2c_f32_bf16 %s, %s, %s' % (v(Q), v(F + d), v(F + d)))
        A('v_mov_b32 v92, %s' % v(S)); A('v_mov_b32 v93, %s' % v(Q))
        A('v_permlane32_swap_b32 v92, %s' % v(S)); A('v_permlane32_swap_b32 v93, %s' % v(Q))
        A('v_pk_add_f32 %s, %s, v[92:93]' % (v(S, 2), v(S, 2)))
        settag(S, tag)
        vmem('buffer_store_dwordx2 %s, %s, %s, %s offen%s' % (v(S, 2), v(vStatSt), s(SWS, 4), s(sSt), sc))
    dual(st)
    for d in (1, 2, 3, 5, 6, 7): A('v_mov_b32 %s, %s' % (v(vRES + d), v(F + d)))
    stamp('xpub%d' % L)
    if L < 2: ckpt(3 + 3 * L)

def layerB(L):
    st = qkv(L)
    ln_N(vAK, vCsK)
    ln_N(vAV, vCsV); pack(vAV)
    phi(vAK, 96); pack(vAK)
    for i in range(4): A('v_mov_b32 %s, %s' % (v(40 + i), s(sONE)))
    D1, D2 = 96, 112
    mfma(v(D1, 16), v(vAK, 4), v(vAV, 4), '0')
    mfma(v(D2, 16), v(vAK, 4), v(40, 4), '0')
    mfma(v(D1, 16), v(vAK + 4, 4), v(vAV + 4, 4), v(D1, 16))
    mfma(v(D2, 16), v(vAK + 4, 4), v(40, 4), v(D2, 16))
    A('s_add_u32 %s, %s, %d' % (s(sT0), s(sM0), R3b))
    A('v_add_u32 v56, %s, %s' % (s(sT0), v(vL16)))
    A('s_mov_b32 %s, 0x%x' % (s(sLkv), (L >> 1) * 0x100000))
    A('s_lshl_b32 %s, %s, 12' % (s(sT0), s(sR))); A('s_add_u32 %s, %s, %s' % (s(sT0), s(sT0), s(sLkv)))
    for j in range(8):
        A('v_cndmask_b32 %s, %s, %s, %s' % (v(32 + j), v(D1 + 8 + j), v(D1 + j), s(sHALF, 2)))
    for p in range(2):
        lds('ds_write_b128 %s, %s offset:%d' % (v(vKV), v(32 + 4 * p, 4), 32768 + p * 1024))
    for j in range(8):
        A('v_cndmask_b32 %s, %s, %s, %s' % (v(40 + j), v(D2 + j), v(D2 + 8 + j), s(sHALF, 2)))
    for p in range(2, 4):
        lds('ds_write_b128 %s, %s offset:%d' % (v(vKV), v(32 + 4 * p, 4), 32768 + p * 1024))
    wait_all()
    barrier()
    for j in range(4):
        t = lds('ds_read_b128 %s, v56 offset:%d' % (v(32 + 4 * j, 4), j * 4096))
    wait(lg=t)
    A('v_pk_add_f32 v[32:33], v[32:33], v[36:37]'); A('v_pk_add_f32 v[34:35], v[34:35], v[38:39]')
    A('v_pk_add_f32 v[40:41], v[40:41], v[44:45]'); A('v_pk_add_f32 v[42:43], v[42:43], v[46:47]')
    A('v_pk_add_f32 v[32:33], v[32:33], v[40:41]'); A('v_pk_add_f32 v[34:35], v[34:35], v[42:43]')
    settag(32, 1)
    vmem('buffer_store_dwordx4 v[32:35], %s, %s, %s offen sc0 sc1' % (v(vRec), s(SWS, 4), s(sT0)))
    stamp('kvpub%d' % L)
    fill = {}
    def swprep():
        A('s_lshl_b32 %s, %s, 16' % (s(sT0), s(sC))); A('s_add_u32 %s, %s, %s' % (s(sT0), s(sT0), s(sLkv)))
        A('s_add_u32 %s, %s, 0x%x' % (s(sT0), s(sT0), LKV))
        A('s_lshr_b32 %s, %s, 1' % (s(sT1), s(sW))); A('s_lshl_b32 %s, %s, 15' % (s(sT1), s(sT1))); A('s_add_u32 %s, %s, %s' % (s(sHalo0), s(sT0), s(sT1)))
        A('s_and_b32 %s, %s, 1' % (s(sT1), s(sW))); A('s_lshl_b32 %s, %s, 15' % (s(sT2), s(sT1))); A('s_add_u32 %s, %s, %s' % (s(sHalo1), s(sT0), s(sT2)))
    def swprep2():
        A('s_lshl_b32 %s, %s, 10' % (s(sT1), s(sT1))); A('s_add_u32 %s, %s, %s' % (s(sHalo0), s(sHalo0), s(sT1)))
        A('v_lshrrev_b32 v57, 4, %s' % v(vLane)); A('v_lshlrev_b32 v57, 5, v57')
        A('v_and_b32 v58, 1, %s' % v(vLane)); A('v_lshl_add_u32 v57, v58, 4, v57')
    def swprep3():
        A('v_add_u32 v59, %d, v57' % (L_RED2 + 4096))
        A('v_bfe_u32 v58, %s, 1, 3' % v(vLane)); A('v_lshl_add_u32 v57, v58, 12, v57')
        A('s_lshl_b32 %s, %s, 7' % (s(sT1), s(sW))); A('v_add_u32 v59, %s, v59' % s(sT1))
    def sw1(j):
        if j == 8:
            return vmem('buffer_load_dwordx4 v[60:63], v57, %s, %s offen offset:2048 sc1' % (s(SWS, 4), s(sHalo1)))
        A('s_add_u32 %s, %s, %d' % (s(sVal), s(sHalo0), j * 4096))
        vmem('buffer_load_dwordx4 %s, %s, %s, %s offen sc1' % (v(vX + 4 * j, 4), v(vL16), s(SWS, 4), s(sVal)))
    def sweep():
        for j in range(9): sw1(j)
    n2 = 32 - st['qdone']
    fill[13] = [swprep]; fill[14] = [swprep2]; fill[15] = [swprep3]
    for j in range(SWN): fill.setdefault(n2 - SWN + j, []).append(lambda j=j: sw1(j))
    pass2(L, fill, st)
    tmp = []; sv = A.out; A.out = tmp
    qepi(st); phi(vAQ, 96); pack(vAQ)
    if L == 1:
        slice_addr(84, True)
        for i in range(8): sl_trsave(84, AWO[1] + 4 * i, REG[1]['o'], i)
    else:
        slice_addr(84)
        for i in range(8): sl_write(84, a(AWO[1] + 4 * i, 4), REG[3]['o'], i)
    A.out = sv
    j = SWN
    for i, line in enumerate(tmp):
        if j < 9 and i >= SWD and (i - SWD) % 4 == 0:
            h = A.hist; A.hist = []; sw1(j); A.hist = h; j += 1
        A.out.append(line)
    assert j == 9
    stamp('pass2_%d' % L)
    if STOP == 4 and L == 1: dbg_q(); ckpt(4)
    A('s_add_u32 %s, %s, %d' % (s(sT0), s(sM0), L_RED2))
    A('v_add_u32 v56, %s, %s' % (s(sT0), v(vL16)))
    A('v_add_u32 v58, %d, %s' % (L_RED2, v(vL16)))
    A('v_lshrrev_b32 v48, 4, %s' % v(vLane)); A('v_lshlrev_b32 v48, 5, v48'); A('v_add_u32 v48, %d, v48' % (L_RED2 + 4096))
    Lp = newlab('klp'); Ld = newlab('kd'); Lr = newlab('kr')
    A('s_mov_b32 %s, %d' % (s(sSpin), SPIN))
    A.label(Lp)
    wait_all(lg=False)
    tagbad(49, [vX + 4 * j for j in range(8)] + [60], 1)
    A('s_cbranch_vccnz %s' % Lr)
    A.label(Ld)
    with ool():
        A.label(Lr); sweep(); spin_tail(Lp); A('s_waitcnt vmcnt(0)'); A('s_branch %s' % Ld)
    stamp('kvpoll%d' % L)
    for stp in (4, 2, 1):
        for j in range(stp):
            for h in (0, 2):
                A('v_pk_add_f32 %s, %s, %s' % (v(vX + 4 * j + h, 2), v(vX + 4 * j + h, 2), v(vX + 4 * (j + stp) + h, 2)))
    lds('ds_write_b128 v56, %s' % v(vX, 4))
    for dpp in ('quad_perm:[2,3,0,1]', 'row_ror:4', 'row_ror:8'):
        for r in range(60, 64):
            A('v_add_f32_dpp %s, %s, %s %s row_mask:0xf bank_mask:0xf' % (v(r), v(r), v(r), dpp))
    lds('ds_write_b128 v59, v[60:63]')
    wait_all(vm=False)
    barrier()
    t0 = lds('ds_read_b128 v[32:35], v58'); lds('ds_read_b128 v[64:67], v58 offset:2048')
    lds('ds_read_b128 v[40:43], v48'); t1 = lds('ds_read_b128 v[72:75], v48 offset:128')
    lds('ds_read_b128 v[36:39], v58 offset:1024'); lds('ds_read_b128 v[68:71], v58 offset:3072')
    lds('ds_read_b128 v[44:47], v48 offset:16'); t2 = lds('ds_read_b128 v[76:79], v48 offset:144')
    for hf, t in ((0, t1), (1, t2)):
        wait(lg=t)
        for b in (32 + 4 * hf, 34 + 4 * hf, 40 + 4 * hf, 42 + 4 * hf):
            A('v_pk_add_f32 %s, %s, %s' % (v(b, 2), v(b, 2), v(b + 32, 2)))
        for d in (2 * hf, 2 * hf + 1):
            A('v_cvt_pk_bf16_f32 %s, %s, %s' % (v(80 + d), v(32 + 2 * d), v(33 + 2 * d)))
            A('v_cvt_pk_bf16_f32 %s, %s, %s' % (v(84 + d), v(40 + 2 * d), v(41 + 2 * d)))
    for d in range(4): A('v_cndmask_b32 %s, %s, %s, %s' % (v(96 + d), v(84 + d), v(80 + d), s(sHALF, 2)))
    for d in range(2): A('v_cndmask_b32 %s, %s, %s, %s' % (v(100 + d), v(80 + d), v(84 + d), s(sHALF, 2)))
    mfma(v(64, 16), v(96, 4), v(vAQ, 4), '0')
    for d in range(2, 4): A('v_cndmask_b32 %s, %s, %s, %s' % (v(100 + d), v(80 + d), v(84 + d), s(sHALF, 2)))
    mfma(v(48, 16), v(100, 4), v(vAQ + 4, 4), '0')
    otag = 1
    def fin(den, num, out, off):
        A('v_add_f32 %s, 0x%08x, %s' % (v(den), f2u(1e-6), v(den)))
        A('v_rcp_f32 %s, %s' % (v(den), v(den)))
        for r in range(8): A('v_mul_f32 %s, %s, %s' % (v(num + r), v(num + r), v(den)))
        for d in range(4): A('v_cvt_pk_bf16_f32 %s, %s, %s' % (v(out + d), v(num + 2 * d), v(num + 2 * d + 1)))
        settag(out, otag)
        dual(lambda sc: vmem('buffer_store_dwordx4 %s, %s, %s, %s offen offset:%d%s' % (v(out, 4), v(vL16), s(SWS, 4), s(sOo), off, sc)))
    fin(72, 64, 104, 0)
    fin(48, 56, 108, 1024)
    stamp('apply%d' % L)
    if L == 1: ckpt(5)
    wo_phase(L)

def final():
    F = vAQ
    A('v_and_b32 v64, 31, %s' % v(vLane)); A('v_lshlrev_b32 v64, 10, v64')
    A('v_lshrrev_b32 v65, 5, %s' % v(vLane)); A('v_lshl_add_u32 v64, v65, 4, v64')
    A('s_lshl_b32 %s, %s, 6' % (s(sT0), s(sC))); A('s_add_u32 %s, %s, %s' % (s(sT0), s(sT0), s(sXb)))
    for x, y in ((0, 2), (1, 3), (4, 6), (5, 7)): A('v_permlane32_swap_b32 %s, %s' % (v(F + x), v(F + y)))
    A('buffer_store_dwordx4 %s, v64, %s, %s offen' % (v(F, 4), s(SOUT, 4), s(sT0)))
    A('buffer_store_dwordx4 %s, v64, %s, %s offen offset:32' % (v(F + 4, 4), s(SOUT, 4), s(sT0)))
    if STAMPS:
        A('s_waitcnt vmcnt(0)')
        stamp('end')
        A('s_memrealtime %s' % s(sST, 2)); A('s_waitcnt lgkmcnt(0)')
        A('v_mov_b32 v95, %s' % s(sST))
        A('ds_write_b32 v93, v95 offset:252')
        A('v_lshl_add_u32 v93, %s, 2, v93' % v(vLane))
        A('ds_read_b32 v95, v93')
        A('s_lshl_b32 s23, s2, 2'); A('s_add_u32 s23, s23, %s' % s(sW))
        A('s_lshl_b32 s23, s23, 9'); A('s_add_u32 s23, s23, 0x%x' % DBGBUF)
        A('v_lshlrev_b32 v93, 2, %s' % v(vLane))
        A('s_waitcnt lgkmcnt(0)')
        A('buffer_store_dword v95, v93, %s, s23 offen' % s(SWS, 4))
    A.label('L_end')
    A('s_endpgm')
    A.out += OOL
    A.raw('L_codeend:')

def main():
    prologue()
    layerA(0); layerB(1); layerA(2); layerB(3)
    final()
    hdr = open('interleave_layers__sliding_block__linear_attn_block__prompt.s.ref').read().split('\n')
    head = [l for l in hdr if l.startswith(';') and '@launch' not in l]
    txt = '\n'.join(head) + '\n; @launch grid=(256,1,1) block=(256,1,1) lds=%d\n' % LDS_BYTES
    txt += '.amdgcn_target "amdgcn-amd-amdhsa--gfx950"\n.text\n.globl %s\n.p2align 8\n.type %s,@function\n%s:\n' % (NAME, NAME, NAME)
    txt += A.text()
    txt += '''.section .rodata,"a"
.p2align 6
.amdhsa_kernel %s
  .amdhsa_next_free_vgpr 512
  .amdhsa_next_free_sgpr 102
  .amdhsa_accum_offset 256
  .amdhsa_group_segment_fixed_size 0
  .amdhsa_kernarg_size 72
  .amdhsa_user_sgpr_count 2
  .amdhsa_user_sgpr_kernarg_segment_ptr 1
  .amdhsa_system_sgpr_workgroup_id_x 1
.end_amdhsa_kernel
''' % NAME
    out = [x for x in sys.argv[1:] if not x.startswith('--')][0]
    open(out, 'w').write(txt)
    if STAMPS: open(out + '.stamps', 'w').write('\n'.join(stamp_names))
    print('wrote', out, 'lines', len(A.out), 'nop states', A.nops)
main()
```
